```python
import torch

def _softmax(x, axis=-1):
    return torch.softmax(x, dim=axis)
def _gelu(x):
    return torch.nn.functional.gelu(x, approximate="tanh")
def _silu(x):
    return torch.nn.functional.silu(x)
def _sigmoid(x):
    return torch.sigmoid(x)
def _layernorm(x, axis=-1, eps=1e-5):
    m = x.mean(dim=axis, keepdim=True)
    v = x.var(dim=axis, keepdim=True, unbiased=False)
    return (x - m) / torch.sqrt(v + eps)
def _scatter_add(tgt, idx, src, axis=0):
    return tgt.clone().index_add_(axis, idx, src)
def _segment_sum(src, seg, n):
    out = torch.zeros((n,) + src.shape[1:], dtype=src.dtype)
    return out.index_add_(0, seg, src)
def _pad(x, pw):
    flat = tuple(v for pair in reversed(pw) for v in pair)
    return torch.nn.functional.pad(x, flat)

kernel_name = 'parallel_sum__sliding_block_cached__dense_activation_silu__decode'

def setup_inputs():

    _w = (lambda a: (lambda t: t.to(torch.bfloat16) if t.is_floating_point() else t)(torch.as_tensor(a)))
    def _A_setup():
        B, Sq, D = 1, 1, 512
        Hq, Hkv, Sk, Dh = 32, 8, 65536, 128
        assert Hq % Hkv == 0, (Hq, Hkv)
        return {
            "x": _w((lambda *s: torch.randn(*s, dtype=torch.bfloat16) * 0.05)(B, Sq, D)),
            "k_cache": _w((lambda *s: torch.randn(*s, dtype=torch.bfloat16) * 3.2)(B, Hkv, Sk, Dh)),
            "v_cache": _w((lambda *s: torch.randn(*s, dtype=torch.bfloat16) * 0.8)(B, Hkv, Sk, Dh)),
            "wq": _w((lambda *s: torch.randn(*s, dtype=torch.bfloat16) * 3.2)(D, Hq * Dh) * (D ** -0.5)),
            "wo": _w((lambda *s: torch.randn(*s, dtype=torch.bfloat16) * 0.8)(Hq * Dh, D) * ((Hq * Dh) ** -0.5)),
        }
    _A_in = _A_setup()

    def _B_setup():
        B, S, D, F = 1, 1, 512, 1792
        return {
            "x": _w((lambda *s: torch.randn(*s, dtype=torch.bfloat16) * 0.05)(B, S, D)),
            "w1": _w((lambda *s: torch.randn(*s, dtype=torch.bfloat16) * 3.2)(D, F) * (D ** -0.5)),
            "w2": _w((lambda *s: torch.randn(*s, dtype=torch.bfloat16) * 0.4)(F, D) * (F ** -0.5)),
        }
    _B_in = _B_setup()

    return {
        "A_x": _A_in["x"],
        "A_k_cache": _A_in["k_cache"],
        "A_v_cache": _A_in["v_cache"],
        "A_wq": _A_in["wq"],
        "A_wo": _A_in["wo"],
        "B_x": _B_in["x"],
        "B_w1": _B_in["w1"],
        "B_w2": _B_in["w2"],
    }

def reference(A_x, A_k_cache, A_v_cache, A_wq, A_wo, B_x, B_w1, B_w2):
    def _A_ref(x, k_cache, v_cache, wq, wo):
        B, Sq, D = x.shape
        Hq, Dh = 32, 128
        Hkv, Sk = k_cache.shape[1], k_cache.shape[2]
        W = min(4096, max(256, Sk // 4))
        rep = Hq // Hkv
        q = (lambda x, *d: x.permute(*d))((x @ wq).reshape(B, Sq, Hq, Dh), 0, 2, 1, 3)
        k = (lambda x, n, axis: torch.repeat_interleave(x, n, dim=axis))(k_cache[:, :, Sk - W:, :], rep, axis=1)
        v = (lambda x, n, axis: torch.repeat_interleave(x, n, dim=axis))(v_cache[:, :, Sk - W:, :], rep, axis=1)
        scores = torch.einsum("bhqd,bhkd->bhqk", q, k) * (Dh ** -0.5)
        p = _softmax(scores, axis=-1)
        o = torch.einsum("bhqk,bhkd->bhqd", p, v)
        return (lambda x, *d: x.permute(*d))(o, 0, 2, 1, 3).reshape(B, Sq, Hq * Dh) @ wo

    def _B_ref(x, w1, w2):
        h = torch.einsum("bsd,df->bsf", x, w1)
        h = _silu(h)
        out = torch.einsum("bsf,fd->bsd", h, w2)
        return out

    x = A_x
    xn = _layernorm(x, axis=-1)
    return x + _A_ref(xn, A_k_cache, A_v_cache, A_wq, A_wo) + _B_ref(xn, B_w1, B_w2)
```

```python
import re
TRANS = ("v_exp_f32","v_log_f32","v_rcp_f32","v_rsq_f32","v_sqrt_f32","v_sin_f32","v_cos_f32")
def regs(op):
    op = op.strip()
    op = re.sub(r"^-|^abs\(|\)$|^\|", "", op).rstrip("|")
    m = re.fullmatch(r"([vsa])(\d+)", op)
    if m: return {(m.group(1), int(m.group(2)))}
    m = re.fullmatch(r"([vsa])\[(\d+):(\d+)\]", op)
    if m: return {(m.group(1), k) for k in range(int(m.group(2)), int(m.group(3))+1)}
    if op == "vcc": return {("s", "vcc")}
    if op == "exec": return {("s", "exec")}
    return set()
class I:
    def __init__(s, text):
        s.text = text
        t = text.split(";")[0].strip()
        parts = t.split(None, 1)
        s.op = parts[0]
        rest = parts[1] if len(parts) > 1 else ""
        ops = [o.strip() for o in rest.split(",")] if rest else []
        if ops:
            ops[-1] = ops[-1].split()[0] if ops[-1].split() else ops[-1]
        s.dpp = "_dpp" in s.op or "row_" in t or "quad_perm" in t
        if "quad_perm" in t:
            ops = [o.strip() for o in rest.split("quad_perm")[0].split(",")]
        s.ops = ops
        op = s.op
        s.valu = op.startswith("v_") and not op.startswith("v_mfma")
        s.mfma = op.startswith("v_mfma")
        s.vmem = op.startswith(("global_","buffer_","flat_"))
        s.ds = op.startswith("ds_")
        s.trans = op.replace("_e32","").replace("_e64","") in TRANS
        s.dot = op.startswith("v_dot")
        s.swap = "permlane" in op
        s.rl = op.startswith(("v_readlane","v_readfirstlane"))
        s.wl = op.startswith("v_writelane")
        s.cmpx = op.startswith("v_cmpx")
        R = [regs(o) for o in ops]
        s.w = set(); s.r = set()
        if s.valu or s.mfma:
            if op == "v_nop": pass
            else:
                s.w |= R[0]
                for x in R[1:]: s.r |= x
                if s.swap: s.w |= R[1]; s.r |= R[0]
                if op.startswith(("v_dot2c","v_fmac","v_writelane")) or s.dpp: s.r |= R[0]
                if s.cmpx: s.w |= {("s","exec")}
                if op.startswith("v_cndmask") and len(ops) == 3: s.r |= {("s","vcc")}
            if s.mfma:
                s.A, s.B, s.C, s.D = R[1], R[2], R[3], R[0]
        elif s.vmem:
            if "load" in op:
                s.w |= R[0]
                for x in R[1:]: s.r |= x
            else:
                for x in R: s.r |= x
                s.data = R[1] if op.startswith("global_") else R[0]
        elif s.ds:
            if "read" in op or "permute" in op or "swizzle" in op:
                s.w |= R[0]
                for x in R[1:]: s.r |= x
            else:
                for x in R: s.r |= x
        s.states = 1
        if op == "s_nop": s.states = int(ops[0], 0) + 1
def check(lines):
    ins = []
    for ln in lines:
        t = ln.split(";")[0].strip()
        if not t or t.startswith(".") or t.endswith(":"): continue
        ins.append(I(t))
    errs = []
    for k, c in enumerate(ins):
        dist = 0
        for p in reversed(ins[max(0,k-24):k]):
            need = 0; why = ""
            def V(x): return {r for r in x if r[0] in "va"}
            def S(x): return {r for r in x if r[0] == "s"}
            if p.valu:
                vw = V(p.w); sw = S(p.w)
                if c.dpp and vw & c.r: need, why = max((need,why),(2,"valu->dpp"))
                if c.rl and vw & c.r: need, why = max((need,why),(1,"valu->readlane"))
                if c.swap and vw & (c.r|c.w): need, why = max((need,why),(2,"valu->permlane"))
                if (c.valu or c.mfma) and (sw - {("s","exec")}) & c.r: need, why = max((need,why),(2,"valu sgpr->valu"))
                if c.vmem and sw & c.r: need, why = max((need,why),(5,"valu sgpr->vmem"))
                if p.trans and (c.valu or c.vmem or c.ds or c.mfma) and not c.trans and vw & c.r: need, why = max((need,why),(1,"trans"))
                if c.mfma and vw & c.r: need, why = max((need,why),(2,"valu->mfma"))
                if p.cmpx:
                    if c.mfma or c.rl or c.wl or c.swap: need, why = max((need,why),(4,"cmpx->x"))
                    if c.dpp: need, why = max((need,why),(5,"cmpx->dpp"))
                if p.dot:
                    same = p.op == c.op
                    if same:
                        srcs = set()
                        for o in c.ops[1:3]: srcs |= regs(o)
                        if vw & srcs: need, why = max((need,why),(3,"dot->dot AB"))
                    elif vw & (c.r | c.w): need, why = max((need,why),(3,"dot->other"))
            if p.mfma:
                if c.mfma:
                    if p.D & (c.A | c.B): need, why = max((need,why),(8,"mfma->mfma AB"))
                    if p.D & c.C and p.D != c.C: need, why = max((need,why),(6,"mfma->mfma C"))
                elif (c.valu or c.vmem or c.ds) and p.D & (c.r | c.w): need, why = max((need,why),(8,"mfma D->x"))
                if c.valu and p.C & c.w: need, why = max((need,why),(3,"mfma C WAR"))
            if p.vmem and "store" in p.op and ("x4" in p.op or "x3" in p.op):
                if (c.valu or c.mfma or c.vmem or c.ds) and p.data & c.w: need, why = max((need,why),(2,"store WAR"))
            if need > dist:
                errs.append(f"HAZARD {why}: need {need} have {dist}\n    {p.text}\n    {c.text}")
            dist += p.states
            if dist > 10: break
    return errs
```

```python
import sys, struct, argparse
sys.path.insert(0, "gen")
import hazard

NAME = "parallel_sum__sliding_block_cached__dense_activation_silu__decode"

def f2u(x): return struct.unpack("<I", struct.pack("<f", x))[0]
LOG2E = f2u(1.4426950408889634)
SCALE = f2u(128 ** -0.5)
EPS = f2u(1e-5)

OREC, AREC, BREC, QREC, HREC, MLREC, EPOCH = 0x0, 0x100000, 0x140000, 0x180000, 0x1A0000, 0x1C0000, 0x1C8000
STAMPS = 0x400000
REPS = 0x4000
NREP = 8
L_RED, L_Q, L_ML, L_O, L_B, L_A = 0, 512, 1536, 2048, 10240, 12288
LDS_BYTES = 14336
SPIN_LIMIT = 0x40000

class G:
    def __init__(s, opt):
        s.o = opt; s.lines = []; s.vm = []; s.nst = 0; s.lab = 0
    def e(s, t):
        for ln in t.strip("\n").split("\n"):
            s.lines.append("    " + ln.strip() if not ln.strip().endswith(":") else ln.strip())
    def c(s, t): s.lines.append("    ; " + t)
    def vmem(s, t, name, count=True):
        s.e(t)
        if count: s.vm.append(name)
    def wait(s, name, extra=""):
        idx = max(k for k, n in enumerate(s.vm) if n == name)
        n = len(s.vm) - 1 - idx
        s.e(f"s_waitcnt vmcnt({n}) {extra}".strip())
    def stamp(s, label=""):
        if not s.o.stamps: return
        k = s.nst; s.nst += 1
        s.e(f"s_memtime s[22:23]\ns_waitcnt lgkmcnt(0)\nv_writelane_b32 v{VST}, s22, {k}")
        s.names.append(label)
    def label(s, base):
        s.lab += 1; return f"L_{base}_{s.lab}"

def r(b, n=1): return f"v{b}" if n == 1 else f"v[{b}:{b+n-1}]"
def sr(b, n=1): return f"s{b}" if n == 1 else f"s[{b}:{b+n-1}]"

TID, VL, VL16, VTAG = 0, 1, 2, 3
T = 4
X8, XQ, XH, DUM = 20, 24, 26, 27
WQ, W1 = 28, 44
W2, WO = 28, 36
K, V = 52, 84
TV = K
MLG, OG = 84, 100
Q = 116
WOP = 116
S, PA, OACC = 132, 140, 156
AQ, AH = 132, 140
vKo, vVo, vW2o, vWOo, vWOo2, vPub, vRedW, vOW, vOG, vMLG, vFin, vTmp = range(164, 176)
vQrd, vOrd, vXres, vOut = 176, 177, 178, 179
VST = 180
NVGPR = 184
pX, pK, pV, pWQ, pWO, pW1, pW2, pOUT, pWS = 4, 6, 8, 10, 12, 16, 18, 20, 24
sG, sI, sW, sTAG, sLO, sHI = 26, 27, 28, 29, 30, 31
SB = 32
sR, sSPIN, sOFF, sCNT, sXRES = 96, 98, 99, 100, 101
sHOFF = 14
sH = 88

def dpp_add(g, v, ctrl, op="add"):
    g.e(f"v_{op}_f32_dpp v{v}, v{v}, v{v} {ctrl} bank_mask:0xf")

def wave_sum_to_sgpr(g, v, sd):
    for c in ("row_ror:8 row_mask:0xf", "row_ror:4 row_mask:0xf", "row_ror:2 row_mask:0xf", "row_ror:1 row_mask:0xf",
              "row_bcast:15 row_mask:0xa", "row_bcast:31 row_mask:0xc"):
        g.e("s_nop 1"); dpp_add(g, v, c)
    g.e(f"s_nop 0\nv_readlane_b32 s{sd}, v{v}, 63\ns_nop 1")

def bf16r(g, d, s_):
    g.e(f"v_cvt_pk_bf16_f32 v{d}, v{s_}, v{s_}\nv_lshlrev_b32 v{d}, 16, v{d}")

def xor_reduce(g, v, t, op, bits):
    for b in bits:
        sw = "v_permlane32_swap_b32" if b == 5 else "v_permlane16_swap_b32"
        g.e(f"v_mov_b32 v{t}, v{v}\ns_nop 1\n{sw} v{v}, v{t}\nv_{op}_f32 v{v}, v{v}, v{t}")

def poll(g, name, loads, tags, init_mask=None, pre_issued=False):
    top = g.label(name); first = g.label(name + "f")
    if init_mask is None: g.e(f"s_mov_b64 s[{sR}:{sR+1}], -1")
    else: g.e(f"s_mov_b32 s{sR}, {init_mask & 0xffffffff:#x}\ns_mov_b32 s{sR+1}, {init_mask >> 32:#x}")
    if pre_issued:
        g.e(f"s_mov_b64 exec, s[{sR}:{sR+1}]\ns_branch {first}")
    g.e(f"{top}:")
    g.e(f"s_sub_u32 s{sSPIN}, s{sSPIN}, 1\ns_cbranch_scc1 L_end")
    g.e(f"s_mov_b64 exec, s[{sR}:{sR+1}]")
    for l in loads: g.e(l)
    g.e(f"{first}:")
    g.e("s_waitcnt vmcnt(0)")
    for t in tags: g.e(f"v_cmpx_eq_u32 vcc, v{VTAG}, v{t}")
    g.e(f"s_andn2_b64 s[{sR}:{sR+1}], s[{sR}:{sR+1}], exec\ns_cbranch_scc1 {top}")
    g.e("s_mov_b64 exec, -1")
    g.vm = []

def build(o):
    g = G(o); g.names = []
    e = g.e
    NT = "nt" if o.nt else ""
    e(f"{NAME}_kernel:")
    e("s_cmp_ge_u32 s2, 256\ns_cbranch_scc1 L_end")
    e("s_load_dwordx16 s[4:19], s[0:1], 0\ns_load_dwordx4 s[20:23], s[0:1], 64\ns_load_dwordx2 s[24:25], s[0:1], 80")
    if o.stamps:
        e(f"s_memrealtime s[40:41]\ns_memtime s[42:43]\nv_mov_b32 v{VST}, 0")
    g.c("prefetch this kernel's code into L2")
    e(f"s_getpc_b64 s[{sR}:{sR+1}]\nv_lshlrev_b32 v{T}, 5, v0\nv_min_u32 v{T}, CODE_BYTES-64, v{T}")
    g.vmem(f"global_load_dword v{DUM}, v{T}, s[{sR}:{sR+1}]", "code")
    e(f"""
    v_and_b32 v{VL}, 63, v0
    v_lshrrev_b32 v{T+1}, 6, v0
    s_and_b32 s{sG}, s2, 7
    s_lshr_b32 s{sI}, s2, 3
    v_readfirstlane_b32 s{sW}, v{T+1}
    v_lshlrev_b32 v{VL16}, 4, v{VL}
    s_min_u32 s32, s{sI}, 27
    s_mul_i32 s33, s{sG}, 28
    s_add_u32 s33, s33, s32            ; f / u
    v_lshrrev_b32 v{T+2}, 1, v0
    v_lshlrev_b32 v{T+3}, 3, v{T+2}
    v_lshlrev_b32 v{T+4}, 2, v0
    s_lshl_b32 s34, s{sG}, 10
    s_lshl_b32 s35, s{sI}, 5
    s_add_u32 s34, s34, s35
    v_and_b32 v{T+5}, 1, v0
    v_lshlrev_b32 v{T+5}, 4, v{T+5}
    v_lshl_add_u32 v{T+5}, v{T+2}, 15, v{T+5}
    v_add_u32 v{T+5}, s34, v{T+5}
    v_add_u32 v{T+6}, 0x2000, v{T+5}
    v_add_u32 v{T+7}, 0x4000, v{T+5}
    v_add_u32 v{T+8}, 0x6000, v{T+5}
    s_lshl_b32 s34, s33, 4
    v_mul_u32_u24 v{T+9}, 7168, v0
    v_add_u32 v{T+9}, s34, v{T+9}       ; w1
    s_lshl_b32 s34, s{sG}, 24
    s_lshl_b32 s35, s{sI}, 15
    s_add_u32 s34, s34, s35
    s_add_u32 s34, s34, 0xF01000
    v_lshl_add_u32 v{vVo}, v{T+1}, 13, s34
    v_and_b32 v{T+10}, 3, v0
    v_bfe_u32 v{T+11}, v0, 2, 2
    v_lshl_add_u32 v{vKo}, v{T+10}, 10, v{vVo}
    v_lshl_add_u32 v{vKo}, v{T+11}, 8, v{vKo}
    v_and_b32 v{T+12}, 48, v0
    v_add_u32 v{vKo}, v{T+12}, v{vKo}
    v_add_u32 v{vVo}, v{VL16}, v{vVo}
    v_mov_b32 v{T+13}, {EPOCH:#x}
    v_mov_b32 v{T+14}, 0
    s_mov_b32 s{sLO}, 0x05040100
    s_mov_b32 s{sHI}, 0x07060302
    s_mov_b32 s{sSPIN}, {SPIN_LIMIT:#x}
    s_mov_b32 s36, {EPOCH:#x}
    s_lshl_b32 s37, s{sG}, 5
    s_add_u32 s37, s37, s{sI}           ; c' = 32g+i
    s_lshl_b32 s38, s37, 2
    s_waitcnt lgkmcnt(0)
    """)
    g.vmem(f"global_load_dwordx4 {r(X8,4)}, v{VL16}, {sr(pX,2)}", "x")
    g.vmem(f"global_load_dwordx2 {r(XQ,2)}, v{T+3}, {sr(pX,2)}", "x")
    g.vmem(f"global_load_dword v{XH}, v{T+4}, {sr(pX,2)}", "x")
    for u in range(4):
        g.vmem(f"global_load_dwordx4 {r(WQ+4*u,4)}, v{T+5+u}, {sr(pWQ,2)} {o.wqpol}", "wq")
    for u in range(2):
        g.vmem(f"global_load_dwordx4 {r(W1+4*u,4)}, v{T+9}, {sr(pW1,2)} offset:{3584*u} {o.wqpol}", "w1")
    e(f"s_load_dword s{sTAG}, {sr(pWS,2)}, s36\ns_load_dword s{sXRES}, {sr(pX,2)}, s38")
    def kload(t, j):
        g.vmem(f"global_load_dwordx4 {r(K+16*t+4*j,4)}, v{vKo}, {sr(pK,2)} offset:{t*4096+j*64-4096} {NT}", f"k{t}")
    def vload(n):
        g.vmem(f"global_load_dwordx4 {r(V+4*n,4)}, v{vVo}, {sr(pV,2)} offset:{n*1024-4096} {NT}", f"v{n}")
    for j in range(4): kload(0, j)
    g.c("warm the address translation of ws / out")
    g.vmem(f"global_load_dword v{DUM}, v{T+13}, {sr(pWS,2)}", "tlb")
    g.vmem(f"global_load_dword v{DUM}, v{T+14}, {sr(pOUT,2)}", "tlb")
    for j in range(4): kload(1, j)
    for n in range(o.vearly): vload(n)
    if o.stamps:
        e(f"v_writelane_b32 v{VST}, s40, 62\nv_writelane_b32 v{VST}, s42, 0"); g.nst = 1; g.names.append("start")
    g.stamp("issued")
    g.c("addresses used later")
    e(f"""
    s_lshr_b32 s34, s33, 2              ; rc
    s_and_b32 s35, s33, 3               ; cq2
    s_lshl_b32 s39, s34, 15
    s_lshl_b32 s3, s35, 8
    s_add_u32 s39, s39, s3
    s_add_u32 s39, s39, 4096
    v_lshlrev_b32 v{T+2}, 2, v{VL}
    v_lshl_add_u32 v{vW2o}, v{T+1}, 13, v{T+2}
    v_add_u32 v{vW2o}, s39, v{vW2o}
    s_lshr_b32 s39, s{sI}, 2            ; a
    s_and_b32 s3, s{sI}, 3              ; cq
    s_lshl_b32 s44, s{sG}, 3
    s_add_u32 s44, s44, s39             ; p = 8g+a
    s_lshl_b32 s45, s44, 16
    s_lshl_b32 s46, s3, 8
    s_add_u32 s45, s45, s46
    s_add_u32 s45, s45, 4096
    v_lshl_add_u32 v{vWOo}, v{T+1}, 14, v{T+2}
    v_add_u32 v{vWOo}, s45, v{vWOo}
    v_add_u32 v{vWOo2}, 0x2000, v{vWOo}
    """)
    g.c("publish address for A (wave 0) / B (wave 3) partials, kept in vFin until the final gather address replaces it")
    e(f"""
    s_lshl_b32 s45, s3, 16
    s_lshl_b32 s46, s44, 10
    s_add_u32 s45, s45, s46
    s_add_u32 s45, s45, {AREC:#x}
    s_lshl_b32 s46, s35, 16
    s_lshl_b32 s47, s34, 10
    s_add_u32 s46, s46, s47
    s_add_u32 s46, s46, {BREC:#x}
    s_cmp_eq_u32 s{sW}, 0
    s_cselect_b32 s45, s45, s46
    v_add_u32 v{vFin}, s45, v{VL16}
    s_lshr_b32 s45, s{sG}, 1
    s_lshl_b32 s45, s45, 16
    s_and_b32 s46, s37, 63
    s_lshl_b32 s46, s46, 4
    s_add_u32 s45, s45, s46
    s_add_u32 s45, s45, {AREC:#x}
    v_lshl_add_u32 v{vTmp}, v{VL}, 10, s45
    s_cmp_eq_u32 s{sW}, 1
    s_cselect_b64 vcc, -1, 0
    v_cndmask_b32 v{vFin}, v{vFin}, v{vTmp}, vcc
    v_lshrrev_b32 v{vOut}, 5, v{VL}
    v_lshl_add_u32 v{vOut}, v{vOut}, 1, s38
    """)
    g.c("q/h record publish address")
    e(f"""
    v_and_b32 v{T+3}, 15, v0
    s_lshl_b32 s45, s37, 6
    s_add_u32 s45, s45, {QREC:#x}
    s_lshl_b32 s46, s33, 6
    s_add_u32 s46, s46, {HREC-64:#x}
    v_mov_b32 v{T+4}, s45
    v_mov_b32 v{T+5}, s46
    v_cmp_lt_u32 vcc, 7, v{T+3}
    v_lshrrev_b32 v{T+6}, 4, v0
    v_and_b32 v{T+7}, 1, v{T+6}
    v_cndmask_b32 v{vPub}, v{T+4}, v{T+5}, vcc
    v_lshl_add_u32 v{vPub}, v{T+3}, 3, v{vPub}
    v_lshl_add_u32 v{T+7}, v{T+1}, 1, v{T+7}
    v_lshl_add_u32 v{vPub}, v{T+7}, 14, v{vPub}
    """)
    g.c("LDS address for GEMV partials: w*128 + (8*(l&1) + 2*(rho&1) + (rho>>1))*4")
    e(f"""
    v_and_b32 v{T+4}, 1, v0
    v_lshlrev_b32 v{vRedW}, 5, v{T+4}
    v_bfe_u32 v{T+4}, v0, 4, 1
    v_lshl_add_u32 v{vRedW}, v{T+4}, 3, v{vRedW}
    v_bfe_u32 v{T+4}, v0, 5, 1
    v_lshl_add_u32 v{vRedW}, v{T+4}, 2, v{vRedW}
    v_lshl_add_u32 v{vRedW}, v{T+1}, 7, v{vRedW}
    """)
    g.c("O publish / gather / ML gather addresses, LDS read addresses")
    e(f"""
    s_lshl_b32 s45, s{sG}, 17
    s_lshl_b32 s46, s{sI}, 7
    s_add_u32 s46, s46, s45
    v_lshrrev_b32 v{T+4}, 3, v0
    v_and_b32 v{T+5}, 7, v0
    v_lshl_add_u32 v{vOW}, v{T+4}, 12, s46
    v_lshl_add_u32 v{vOW}, v{T+5}, 4, v{vOW}
    s_lshl_b32 s46, s39, 14
    s_add_u32 s46, s46, s45
    v_lshl_add_u32 v{vOG}, v{T+1}, 12, s46
    v_add_u32 v{vOG}, v{VL16}, v{vOG}
    s_lshr_b32 s46, s44, 1
    s_lshl_b32 s46, s46, 9
    s_add_u32 s46, s46, {MLREC:#x}
    v_lshrrev_b32 v{T+4}, 3, v{VL}
    v_lshl_add_u32 v{vMLG}, v{T+4}, 4, s46
    v_bfe_u32 v{T+4}, v0, 2, 2
    v_lshlrev_b32 v{vQrd}, 8, v{T+4}
    v_add_u32 v{vQrd}, v{T+12}, v{vQrd}
    v_lshrrev_b32 v{T+4}, 2, v0
    v_lshlrev_b32 v{vOrd}, 4, v{T+4}
    v_bfe_u32 v{T+4}, v0, 1, 1
    v_lshl_add_u32 v{vOrd}, v{T+4}, 10, v{vOrd}
    v_and_b32 v{T+4}, 1, v0
    v_lshl_add_u32 v{vOrd}, v{T+4}, 3, v{vOrd}
    s_and_b32 s45, s33, 0xfc
    s_add_u32 s45, s45, s{sW}
    s_lshl_b32 s45, s45, 6
    s_add_u32 s{sHOFF}, s45, {HREC:#x}
    s_lshl_b32 s45, s{sG}, 11
    s_lshl_b32 s46, s{sW}, 9
    s_add_u32 s45, s45, s46
    s_add_u32 s{sOFF}, s45, {QREC:#x}
    s_lshl_b32 s45, s{sG}, 2
    s_add_u32 s45, s45, s{sW}
    s_lshl_b32 s45, s45, 5
    s_add_u32 s45, s45, s{sI}
    s_lshl_b32 s45, s45, 4
    s_add_u32 s15, s45, {MLREC:#x}
    """)
    g.c("layernorm statistics")
    g.wait("x")
    g.stamp("x")
    U = T
    for d in range(4):
        e(f"v_lshlrev_b32 v{U+2*d}, 16, v{X8+d}\nv_and_b32 v{U+2*d+1}, 0xffff0000, v{X8+d}")
    e(f"""
    v_pk_add_f32 {r(T+8,2)}, {r(U,2)}, {r(U+2,2)}
    v_pk_add_f32 {r(T+10,2)}, {r(U+4,2)}, {r(U+6,2)}
    v_pk_add_f32 {r(T+8,2)}, {r(T+8,2)}, {r(T+10,2)}
    v_add_f32 v{T+8}, v{T+8}, v{T+9}
    """)
    wave_sum_to_sgpr(g, T+8, 45)
    e(f"v_mov_b32 v{T+12}, 0x3b000000\nv_mul_f32 v{T+10}, s45, v{T+12}")
    for d in range(4):
        e(f"v_pk_add_f32 {r(U+2*d,2)}, {r(U+2*d,2)}, {r(T+10,2)} op_sel_hi:[1,0] neg_lo:[0,1] neg_hi:[0,1]")
    e(f"v_pk_mul_f32 {r(T+8,2)}, {r(U,2)}, {r(U,2)}")
    for d in range(1, 4):
        e(f"v_pk_fma_f32 {r(T+8,2)}, {r(U+2*d,2)}, {r(U+2*d,2)}, {r(T+8,2)}")
    e(f"v_add_f32 v{T+8}, v{T+8}, v{T+9}")
    wave_sum_to_sgpr(g, T+8, 45)
    e(f"v_mul_f32 v{T+11}, s45, v{T+12}")
    bf16r(g, T+10, T+10)
    bf16r(g, T+11, T+11)
    e(f"v_add_f32 v{T+11}, {EPS:#x}, v{T+11}")
    bf16r(g, T+11, T+11)
    e(f"v_sqrt_f32 v{T+11}, v{T+11}\ns_nop 0")
    bf16r(g, T+11, T+11)
    e(f"v_rcp_f32 v{T+12}, v{T+11}")
    for k, x in enumerate((XQ, XQ+1, XH)):
        a = U + 2*k
        e(f"""
        v_lshlrev_b32 v{a}, 16, v{x}
        v_and_b32 v{a+1}, 0xffff0000, v{x}
        v_pk_add_f32 {r(a,2)}, {r(a,2)}, {r(T+10,2)} op_sel_hi:[1,0] neg_lo:[0,1] neg_hi:[0,1]
        v_cvt_pk_bf16_f32 v{x}, v{a}, v{a+1}
        v_lshlrev_b32 v{a}, 16, v{x}
        v_and_b32 v{a+1}, 0xffff0000, v{x}
        v_pk_mul_f32 {r(a,2)}, {r(a,2)}, {r(T+12,2)} op_sel_hi:[1,0]
        v_cvt_pk_bf16_f32 v{x}, v{a}, v{a+1}
        """)
    g.stamp("ln")
    g.c("q and h slices")
    g.wait("wq")
    g.stamp("wq")
    for half in range(2):
        for d in range(4):
            a, b = WQ + 8*half + d, WQ + 8*half + 4 + d
            e(f"v_perm_b32 v{T+2*d}, v{b}, v{a}, s{sLO}\nv_perm_b32 v{T+2*d+1}, v{b}, v{a}, s{sHI}")
        for k in range(8):
            e(f"v_dot2_f32_bf16 v{AQ+k}, v{T+k}, v{XQ+half}, {'0' if half == 0 else 'v%d' % (AQ+k)}")
    g.wait("w1")
    for d in range(4):
        a, b = W1 + d, W1 + 4 + d
        e(f"v_perm_b32 v{T+2*d}, v{b}, v{a}, s{sLO}\nv_perm_b32 v{T+2*d+1}, v{b}, v{a}, s{sHI}")
    for k in range(8):
        e(f"v_dot2_f32_bf16 v{AH+k}, v{T+k}, v{XH}, 0")
    for A in (AQ, AH):
        for k in range(0, 8, 2): e(f"v_permlane32_swap_b32 v{A+k}, v{A+k+1}")
    for A in (AQ, AH):
        for k in range(0, 8, 2): e(f"v_add_f32 v{A+k}, v{A+k}, v{A+k+1}")
    for A in (AQ, AH):
        for k in (0, 4): e(f"v_permlane16_swap_b32 v{A+k}, v{A+k+2}")
    for A in (AQ, AH):
        for k in (0, 4): e(f"v_add_f32 v{A+k}, v{A+k}, v{A+k+2}")
    for c in (8, 4, 2):
        for v in (AQ, AQ+4, AH, AH+4): dpp_add(g, v, f"row_ror:{c} row_mask:0xf")
    e("s_mov_b32 s45, 0x00030003")
    for v in (AH, AH+4): dpp_add(g, v, "row_ror:1 row_mask:0xf")
    e(f"""
    s_mov_b32 exec_lo, s45
    s_mov_b32 exec_hi, s45
    ds_write2_b32 v{vRedW}, v{AQ}, v{AQ+4} offset0:0 offset1:4
    ds_write2_b32 v{vRedW}, v{AH}, v{AH+4} offset0:16 offset1:20
    s_mov_b64 exec, -1
    v_and_b32 v{T+8}, 15, v0
    v_lshlrev_b32 v{T+9}, 3, v{T+8}
    s_waitcnt lgkmcnt(0)
    s_barrier
    ds_read2_b64 {r(T,4)}, v{T+9} offset0:0 offset1:16
    ds_read2_b64 {r(T+4,4)}, v{T+9} offset0:32 offset1:48
    s_mul_i32 s{sTAG}, s{sTAG}, 0x9E3779B1
    s_add_u32 s{sTAG}, s{sTAG}, 0x7F4A7C15
    v_mov_b32 v{VTAG}, s{sTAG}
    v_cmp_lt_u32 vcc, 7, v{T+8}
    s_waitcnt lgkmcnt(0)
    v_pk_add_f32 {r(T,2)}, {r(T,2)}, {r(T+2,2)}
    v_pk_add_f32 {r(T+4,2)}, {r(T+4,2)}, {r(T+6,2)}
    v_pk_add_f32 {r(T,2)}, {r(T,2)}, {r(T+4,2)}
    v_cvt_pk_bf16_f32 v{T+2}, v{T}, v{T+1}
    v_lshlrev_b32 v{T}, 16, v{T+2}
    v_and_b32 v{T+1}, 0xffff0000, v{T+2}
    v_mul_f32 v{T+4}, {LOG2E | 0x80000000:#x}, v{T}
    v_mul_f32 v{T+5}, {LOG2E | 0x80000000:#x}, v{T+1}
    v_exp_f32 v{T+4}, v{T+4}
    v_exp_f32 v{T+5}, v{T+5}
    s_nop 0
    v_add_f32 v{T+4}, 1.0, v{T+4}
    v_add_f32 v{T+5}, 1.0, v{T+5}
    v_rcp_f32 v{T+4}, v{T+4}
    v_rcp_f32 v{T+5}, v{T+5}
    s_nop 0
    v_pk_mul_f32 {r(T,2)}, {r(T,2)}, {r(T+4,2)}
    v_cvt_pk_bf16_f32 v{T+4}, v{T}, v{T+1}
    v_cndmask_b32 v{T+2}, v{T+2}, v{T+4}, vcc
    v_mov_b32 v{T+3}, s{sTAG}
    s_mov_b64 exec, 0x0fff0fff
    """)
    g.vmem(f"global_store_dwordx2 v{vPub}, {r(T+2,2)}, {sr(pWS,2)} sc1", "qpub")
    e("s_mov_b64 exec, -1")
    g.stamp("qpub")
    for n in range(o.vearly, 8): vload(n)
    e(f"""
    v_cmp_gt_u32 vcc, 32, v{VL}
    s_lshl_b32 s45, s{sXRES}, 16
    s_and_b32 s46, s{sXRES}, 0xffff0000
    v_mov_b32 v{T}, s45
    v_mov_b32 v{T+1}, s46
    v_cndmask_b32 v{vXres}, v{T+1}, v{T}, vcc
    v_lshlrev_b32 v{T+2}, 2, v0
    """)
    g.c("gather q: 2 batches of 4 records, replica per attempt")
    g.wait(o.qwait)
    g.stamp("qwait")
    e(f"""
    s_mov_b32 s{sCNT}, 0
    s_mov_b32 s3, 0
    L_qg:
    s_cmp_ge_u32 s{sCNT}, {NREP}
    s_cbranch_scc1 L_qg_glc
    """)
    for k in range(4): e(f"s_load_dwordx16 {sr(SB+16*k,16)}, {sr(pWS,2)}, s{sOFF} offset:{64*k}")
    for k in range(2): e(f"s_load_dword s{sR+k}, {sr(pWS,2)}, s{sOFF} offset:{256+128*k}\ns_load_dword s{k}, {sr(pWS,2)}, s{sOFF} offset:{320+128*k}")
    e("L_qg_w:\ns_waitcnt lgkmcnt(0)")
    for k in range(32): e(f"v_cmpx_eq_u32 vcc, s{SB+2*k+1}, v{VTAG}")
    e(f"""
    s_cbranch_execnz L_qg_ok
    s_mov_b64 exec, -1
    s_sub_u32 s{sSPIN}, s{sSPIN}, 1
    s_cbranch_scc1 L_end
    s_add_u32 s{sCNT}, s{sCNT}, 1
    s_cmp_ge_u32 s{sCNT}, {NREP}
    s_cbranch_scc1 L_qg
    s_add_u32 s{sOFF}, s{sOFF}, {REPS:#x}
    s_branch L_qg
    L_qg_glc:
    """)
    for k in range(4): e(f"s_load_dwordx16 {sr(SB+16*k,16)}, {sr(pWS,2)}, s{sOFF} offset:{64*k} glc")
    e("s_branch L_qg_w\nL_qg_ok:\ns_nop 3")
    for k in range(32): e(f"v_writelane_b32 v{T}, s{SB+2*k}, {k}")
    e(f"""
    s_mov_b32 exec_hi, 0
    ds_write_b32 v{T+2}, v{T} offset:{L_Q}
    s_mov_b64 exec, -1
    v_add_u32 v{T+2}, 128, v{T+2}
    s_add_u32 s{sOFF}, s{sOFF}, 256
    s_add_u32 s3, s3, 1
    s_cmp_lt_u32 s3, 2
    s_cbranch_scc1 L_qg
    """)
    if o.stamps: e(f"v_writelane_b32 v{VST}, s{sCNT}, 60")
    g.c("h record for this wave's w2 rows")
    e(f"""
    s_mov_b32 s{sCNT}, 0
    L_hg:
    s_cmp_ge_u32 s{sCNT}, {NREP}
    s_cbranch_scc1 L_hg_glc
    s_load_dwordx8 {sr(sH,8)}, {sr(pWS,2)}, s{sHOFF}
    L_hg_w:
    s_waitcnt lgkmcnt(0)
    """)
    for k in range(4): e(f"v_cmpx_eq_u32 vcc, s{sH+2*k+1}, v{VTAG}")
    e(f"""
    s_cbranch_execnz L_hg_ok
    s_mov_b64 exec, -1
    s_sub_u32 s{sSPIN}, s{sSPIN}, 1
    s_cbranch_scc1 L_end
    s_add_u32 s{sCNT}, s{sCNT}, 1
    s_cmp_ge_u32 s{sCNT}, {NREP}
    s_cbranch_scc1 L_hg
    s_add_u32 s{sHOFF}, s{sHOFF}, {REPS:#x}
    s_branch L_hg
    L_hg_glc:
    s_load_dwordx8 {sr(sH,8)}, {sr(pWS,2)}, s{sHOFF} glc
    s_branch L_hg_w
    L_hg_ok:
    s_barrier
    """)
    for j in range(4): e(f"ds_read_b128 {r(Q+4*j,4)}, v{vQrd} offset:{L_Q+64*j}")
    g.stamp("qgot")
    sM, sSC, sL2 = 40, 48, 50
    for k in range(4): e(f"s_mov_b32 s{sM+2*k}, {0x11111111 << k:#x}\ns_mov_b32 s{sM+2*k+1}, {0x11111111 << k:#x}")
    e(f"s_mov_b32 s{sSC}, {SCALE:#x}\ns_mov_b32 s{sSC+1}, {SCALE:#x}\ns_mov_b32 s{sL2}, {LOG2E:#x}\ns_mov_b32 s{sL2+1}, {LOG2E:#x}")
    e(f"""
    v_bfe_u32 v{T+14}, v0, 2, 2
    v_lshlrev_b32 v{T+14}, 5, v{T+14}
    s_lshl_b32 s3, s{sW}, 3
    v_add_u32 v{T+15}, s3, v{T+14}
    s_lshl_b32 s3, s{sW}, 2
    """)
    g.wait("k0", "lgkmcnt(0)")
    for j in range(4): e(f"v_mfma_f32_16x16x32_bf16 {r(S,4)}, {r(K+4*j,4)}, {r(Q+4*j,4)}, {'0' if j == 0 else r(S,4)}")
    g.wait("k1")
    g.stamp("k")
    for j in range(4): e(f"v_mfma_f32_16x16x32_bf16 {r(S+4,4)}, {r(K+16+4*j,4)}, {r(Q+4*j,4)}, {'0' if j == 0 else r(S+4,4)}")
    g.c("w2 / wo loads")
    for n in range(8):
        g.vmem(f"global_load_dword v{W2+n}, v{vW2o}, {sr(pW2,2)} offset:{n*1024-4096} {NT}", "w2")
    def woload(n):
        g.vmem(f"global_load_dword v{WO+n}, v{vWOo if n < 8 else vWOo2}, {sr(pWO,2)} offset:{(n & 7)*1024-4096} {NT}", f"wo{n}")
    if not o.wolate:
        for n in range(16): woload(n)
    for n in range(4):
        a = S + 2*n
        e(f"""
        v_cvt_pk_bf16_f32 v{T}, v{a}, v{a+1}
        v_lshlrev_b32 v{a}, 16, v{T}
        v_and_b32 v{a+1}, 0xffff0000, v{T}
        v_pk_mul_f32 {r(a,2)}, {r(a,2)}, {sr(sSC,2)}
        v_cvt_pk_bf16_f32 v{T}, v{a}, v{a+1}
        v_lshlrev_b32 v{a}, 16, v{T}
        v_and_b32 v{a+1}, 0xffff0000, v{T}
        """)
    m, l = T+2, T+3
    e(f"""
    v_max3_f32 v{m}, v{S}, v{S+1}, v{S+2}
    v_max3_f32 v{T}, v{S+3}, v{S+4}, v{S+5}
    v_max3_f32 v{m}, v{m}, v{S+6}, v{S+7}
    v_max_f32 v{m}, v{m}, v{T}
    """)
    xor_reduce(g, m, T, "max", (5, 4))
    for n in range(4):
        a = S + 2*n
        e(f"v_pk_add_f32 {r(a,2)}, {r(a,2)}, {r(m,2)} op_sel_hi:[1,0] neg_lo:[0,1] neg_hi:[0,1]")
    for n in range(4):
        a = S + 2*n
        e(f"v_pk_mul_f32 {r(a,2)}, {r(a,2)}, {sr(sL2,2)}")
    for k in range(8): e(f"v_exp_f32 v{S+k}, v{S+k}")
    e(f"""
    s_nop 0
    v_pk_add_f32 {r(T,2)}, {r(S,2)}, {r(S+2,2)}
    v_pk_add_f32 {r(T+4,2)}, {r(S+4,2)}, {r(S+6,2)}
    v_pk_add_f32 {r(T,2)}, {r(T,2)}, {r(T+4,2)}
    v_add_f32 v{l}, v{T}, v{T+1}
    """)
    xor_reduce(g, l, T, "add", (5, 4))
    e(f"""
    s_mov_b64 exec, 0x1111
    ds_write_b64 v{T+15}, {r(m,2)} offset:{L_ML}
    s_mov_b64 exec, -1
    s_waitcnt lgkmcnt(0)
    s_barrier
    ds_read_b128 {r(T+4,4)}, v{T+14} offset:{L_ML}
    ds_read_b128 {r(T+8,4)}, v{T+14} offset:{L_ML+16}
    s_waitcnt lgkmcnt(0)
    v_max3_f32 v{T+12}, v{T+4}, v{T+6}, v{T+8}
    v_max_f32 v{T+12}, v{T+12}, v{T+10}
    v_sub_f32 v{m}, v{m}, v{T+12}
    v_sub_f32 v{T+4}, v{T+4}, v{T+12}
    v_sub_f32 v{T+6}, v{T+6}, v{T+12}
    v_sub_f32 v{T+8}, v{T+8}, v{T+12}
    v_sub_f32 v{T+10}, v{T+10}, v{T+12}
    v_mul_f32 v{m}, s{sL2}, v{m}
    v_mul_f32 v{T+4}, s{sL2}, v{T+4}
    v_mul_f32 v{T+6}, s{sL2}, v{T+6}
    v_mul_f32 v{T+8}, s{sL2}, v{T+8}
    v_mul_f32 v{T+10}, s{sL2}, v{T+10}
    v_exp_f32 v{m}, v{m}
    v_exp_f32 v{T+4}, v{T+4}
    v_exp_f32 v{T+6}, v{T+6}
    v_exp_f32 v{T+8}, v{T+8}
    v_exp_f32 v{T+10}, v{T+10}
    v_mul_f32 v{T+14}, v{T+4}, v{T+5}
    v_fmac_f32 v{T+14}, v{T+6}, v{T+7}
    v_fmac_f32 v{T+14}, v{T+8}, v{T+9}
    v_fmac_f32 v{T+14}, v{T+10}, v{T+11}
    v_mov_b32 v{T+13}, s{sTAG}
    v_mov_b32 v{T+15}, s{sTAG}
    v_mov_b32 v{T}, s15
    s_lshl_b64 exec, 1, s3
    """)
    g.vmem(f"global_store_dwordx4 v{T}, {r(T+12,4)}, {sr(pWS,2)} sc1", "mlpub")
    e("s_mov_b64 exec, -1")
    if o.wolate:
        for n in range(16): woload(n)
    for n in range(4):
        a = S + 2*n
        e(f"v_pk_mul_f32 {r(a,2)}, {r(a,2)}, {r(m,2)} op_sel_hi:[1,0]")
    for n in range(4): e(f"v_cvt_pk_bf16_f32 v{T+4+n}, v{S+2*n}, v{S+2*n+1}")
    for rho in range(4):
        for n in range(4): e(f"v_cndmask_b32 v{PA+4*rho+n}, 0, v{T+4+n}, {sr(sM+2*rho,2)}")
    e(f"s_lshl_b32 s3, s{sW}, 11\nv_add_u32 v{T+8}, s3, v{VL16}")
    g.stamp("p")
    def vperm(n, ee):
        d = ee >> 1
        e(f"v_perm_b32 v{TV+4*ee+n}, v{V+4*(2*n+1)+d}, v{V+4*(2*n)+d}, s{sHI if ee & 1 else sLO}")
    for n in range(3):
        g.wait(f"v{2*n+1}")
        for ee in range(8): vperm(n, ee)
    g.wait("v7")
    g.stamp("v")
    def pv(ee):
        acc = OACC + 4*(ee >> 2)
        e(f"v_mfma_f32_16x16x32_bf16 {r(acc,4)}, {r(PA+4*(ee&3),4)}, {r(TV+4*ee,4)}, {'0' if ee & 3 == 0 else r(acc,4)}")
    for ee in range(3): vperm(3, ee)
    for ee in range(8):
        pv(ee)
        if ee + 3 < 8: vperm(3, ee + 3)
    e(f"""
    s_nop 3
    ds_write_b128 v{T+8}, {r(OACC,4)} offset:{L_O}
    s_nop 2
    ds_write_b128 v{T+8}, {r(OACC+4,4)} offset:{L_O+1024}
    v_mov_b32 v{T+13}, s{sTAG}
    v_mov_b32 v{T+15}, s{sTAG}
    s_waitcnt lgkmcnt(0)
    s_barrier
    ds_read2st64_b64 {r(T,4)}, v{vOrd} offset0:{L_O//512} offset1:{L_O//512+4}
    ds_read2st64_b64 {r(T+4,4)}, v{vOrd} offset0:{L_O//512+8} offset1:{L_O//512+12}
    s_waitcnt lgkmcnt(0)
    v_pk_add_f32 {r(T,2)}, {r(T,2)}, {r(T+2,2)}
    v_pk_add_f32 {r(T+4,2)}, {r(T+4,2)}, {r(T+6,2)}
    v_add_f32 v{T+12}, v{T}, v{T+4}
    v_add_f32 v{T+14}, v{T+1}, v{T+5}
    """)
    g.vmem(f"global_store_dwordx4 v{vOW}, {r(T+12,4)}, {sr(pWS,2)} sc1", "opub")
    g.stamp("opub")
    ml_loads = [f"global_load_dwordx4 {r(MLG+4*u,4)}, v{vMLG}, {sr(pWS,2)} offset:{128*u} sc1" for u in range(4)]
    o_loads = [f"global_load_dwordx4 {r(OG+4*u,4)}, v{vOG}, {sr(pWS,2)} offset:{1024*u} sc1" for u in range(4)]
    for ld in ml_loads: g.vmem(ld, "ml")
    g.c("FFN2 partial")
    g.wait("w2")
    g.stamp("w2")
    for n in range(4):
        e(f"v_perm_b32 v{T+2*n}, v{W2+2*n+1}, v{W2+2*n}, s{sLO}\nv_perm_b32 v{T+2*n+1}, v{W2+2*n+1}, v{W2+2*n}, s{sHI}")
    for n in range(4):
        for c in range(2):
            e(f"v_dot2_f32_bf16 v{T+8+c}, v{T+2*n+c}, s{sH+2*n}, {'0' if n == 0 else 'v%d' % (T+8+c)}")
    e(f"""
    v_lshlrev_b32 v{T+10}, 3, v0
    v_lshlrev_b32 v{vTmp}, 3, v{VL}
    s_nop 0
    ds_write_b64 v{T+10}, {r(T+8,2)} offset:{L_B}
    s_waitcnt lgkmcnt(0)
    s_barrier
    s_cmp_lg_u32 s{sW}, 3
    s_cbranch_scc1 L_nob
    ds_read2st64_b64 {r(T,4)}, v{vTmp} offset0:{L_B//512} offset1:{L_B//512+1}
    ds_read2st64_b64 {r(T+4,4)}, v{vTmp} offset0:{L_B//512+2} offset1:{L_B//512+3}
    s_waitcnt lgkmcnt(0)
    v_pk_add_f32 {r(T,2)}, {r(T,2)}, {r(T+2,2)}
    v_pk_add_f32 {r(T+4,2)}, {r(T+4,2)}, {r(T+6,2)}
    v_add_f32 v{T+12}, v{T}, v{T+4}
    v_add_f32 v{T+14}, v{T+1}, v{T+5}
    global_store_dwordx4 v{vFin}, {r(T+12,4)}, {sr(pWS,2)} sc1
    L_nob:
    """)
    g.stamp("bpub")
    if o.owait is not None: g.wait(o.owait)
    for ld in o_loads: g.vmem(ld, "o")
    g.wait("wo15")
    g.stamp("wo")
    for n in range(8):
        e(f"v_perm_b32 v{WOP+2*n}, v{WO+2*n+1}, v{WO+2*n}, s{sLO}\nv_perm_b32 v{WOP+2*n+1}, v{WO+2*n+1}, v{WO+2*n}, s{sHI}")
    g.c("softmax weights of the 32 splits")
    g.wait("ml")
    e(f"s_mov_b64 s[{sR}:{sR+1}], -1\ns_branch L_ml_f\nL_ml:")
    e(f"s_sub_u32 s{sSPIN}, s{sSPIN}, 1\ns_cbranch_scc1 L_end\ns_mov_b64 exec, s[{sR}:{sR+1}]")
    for ld in ml_loads: e(ld)
    e("s_waitcnt vmcnt(0)\nL_ml_f:")
    for u in range(4): e(f"v_cmpx_eq_u32 vcc, v{VTAG}, v{MLG+4*u+1}\nv_cmpx_eq_u32 vcc, v{VTAG}, v{MLG+4*u+3}")
    e(f"s_andn2_b64 s[{sR}:{sR+1}], s[{sR}:{sR+1}], exec\ns_cbranch_scc1 L_ml\ns_mov_b64 exec, -1")
    M_, L_ = T, T+1
    e(f"""
    v_max3_f32 v{M_}, v{MLG}, v{MLG+4}, v{MLG+8}
    v_max_f32 v{M_}, v{M_}, v{MLG+12}
    s_nop 1
    v_max_f32_dpp v{M_}, v{M_}, v{M_} row_ror:8 row_mask:0xf bank_mask:0xf
    """)
    xor_reduce(g, M_, T+2, "max", (5, 4))
    for u in range(4): e(f"v_sub_f32 v{MLG+4*u}, v{MLG+4*u}, v{M_}")
    for u in range(4): e(f"v_mul_f32 v{MLG+4*u}, s{sL2}, v{MLG+4*u}")
    for u in range(4): e(f"v_exp_f32 v{MLG+4*u}, v{MLG+4*u}")
    e(f"v_mul_f32 v{L_}, v{MLG}, v{MLG+2}")
    for u in range(1, 4): e(f"v_fmac_f32 v{L_}, v{MLG+4*u}, v{MLG+4*u+2}")
    e(f"s_nop 1\nv_add_f32_dpp v{L_}, v{L_}, v{L_} row_ror:8 row_mask:0xf bank_mask:0xf")
    xor_reduce(g, L_, T+2, "add", (5, 4))
    e(f"v_rcp_f32 v{L_}, v{L_}\ns_nop 0")
    for u in range(4): e(f"v_mul_f32 v{MLG+4*u}, v{MLG+4*u}, v{L_}")
    g.stamp("wgt")
    poll(g, "o", o_loads, [OG+4*u+k for u in range(4) for k in (1, 3)], pre_issued=True)
    g.stamp("ogot")
    a0, a1 = T, T+1
    e(f"v_mul_f32 v{a0}, v{MLG}, v{OG}\nv_mul_f32 v{a1}, v{MLG}, v{OG+2}")
    for u in range(1, 4): e(f"v_fmac_f32 v{a0}, v{MLG+4*u}, v{OG+4*u}\nv_fmac_f32 v{a1}, v{MLG+4*u}, v{OG+4*u+2}")
    e(f"""
    s_nop 1
    v_permlane32_swap_b32 v{a0}, v{a1}
    v_add_f32 v{a0}, v{a0}, v{a1}
    s_nop 1
    v_add_f32_dpp v{a0}, v{a0}, v{a0} row_ror:8 row_mask:0xf bank_mask:0xf
    v_mov_b32 v{a1}, v{a0}
    s_nop 1
    v_permlane16_swap_b32 v{a0}, v{a1}
    v_add_f32 v{a0}, v{a0}, v{a1}
    v_mov_b32 v{a1}, v{a0}
    s_nop 1
    v_permlane32_swap_b32 v{a0}, v{a1}
    v_cvt_pk_bf16_f32 v{a0}, v{a0}, v{a1}
    s_nop 0
    """)
    for n in range(8): e(f"v_readlane_b32 s{SB+n}, v{a0}, {n}")
    for n in range(8):
        for c in range(2):
            e(f"v_dot2_f32_bf16 v{T+8+c}, v{WOP+2*n+c}, s{SB+n}, {'0' if n == 0 else 'v%d' % (T+8+c)}")
    e(f"""
    s_nop 2
    ds_write_b64 v{T+10}, {r(T+8,2)} offset:{L_A}
    s_waitcnt lgkmcnt(0)
    s_barrier
    s_cmp_eq_u32 s{sW}, 1
    s_cbranch_scc1 L_final
    s_cmp_lg_u32 s{sW}, 0
    s_cbranch_scc1 L_out
    ds_read2st64_b64 {r(T,4)}, v{vTmp} offset0:{L_A//512} offset1:{L_A//512+1}
    ds_read2st64_b64 {r(T+4,4)}, v{vTmp} offset0:{L_A//512+2} offset1:{L_A//512+3}
    s_waitcnt lgkmcnt(0)
    v_pk_add_f32 {r(T,2)}, {r(T,2)}, {r(T+2,2)}
    v_pk_add_f32 {r(T+4,2)}, {r(T+4,2)}, {r(T+6,2)}
    v_add_f32 v{T+12}, v{T}, v{T+4}
    v_add_f32 v{T+14}, v{T+1}, v{T+5}
    global_store_dwordx4 v{vFin}, {r(T+12,4)}, {sr(pWS,2)} sc1
    """)
    g.stamp("apub")
    e("s_branch L_out\nL_final:")
    def final_reduce(dst, src):
        e(f"""
        s_nop 3
        v_permlane32_swap_b32 v{src}, v{src+2}
        v_add_f32 v{dst}, v{src}, v{src+2}
        v_mov_b32 v{src+2}, v{dst}
        s_nop 1
        v_permlane16_swap_b32 v{dst}, v{src+2}
        v_add_f32 v{dst}, v{dst}, v{src+2}
        """)
        for c in (8, 4, 2, 1):
            e("s_nop 1"); dpp_add(g, dst, f"row_ror:{c} row_mask:0xf")
    e(f"v_add_u32 v{vTmp}, {BREC-AREC:#x}, v{vFin}\nv_mov_b32 v{T+4}, 0\nv_mov_b32 v{T+6}, 0")
    poll(g, "b", [f"global_load_dwordx4 {r(T+4,4)}, v{vTmp}, {sr(pWS,2)} sc1"], [T+5, T+7], init_mask=(1 << 56) - 1)
    a_loads = [f"global_load_dwordx4 {r(T+8,4)}, v{vFin}, {sr(pWS,2)} sc1"]
    e(a_loads[0])
    final_reduce(T, T+4)
    bf16r(g, T, T)
    g.stamp("bgot")
    poll(g, "a", a_loads, [T+9, T+11], pre_issued=True)
    g.stamp("agot")
    final_reduce(T+1, T+8)
    bf16r(g, T+1, T+1)
    e(f"v_add_f32 v{T+1}, v{vXres}, v{T+1}")
    bf16r(g, T+1, T+1)
    e(f"""
    v_add_f32 v{T+1}, v{T+1}, v{T}
    v_cvt_pk_bf16_f32 v{T+1}, v{T+1}, v{T+1}
    s_mov_b32 exec_lo, 1
    s_mov_b32 exec_hi, 1
    global_store_short v{vOut}, v{T+1}, {sr(pOUT,2)} {o.outpol}
    s_cmp_lg_u32 s2, 0
    s_cbranch_scc1 L_out
    v_mov_b32 v{T+2}, {EPOCH:#x}
    global_store_dword v{T+2}, v{VTAG}, {sr(pWS,2)} sc1
    L_out:
    """)
    if o.stamps:
        e(f"""
        s_mov_b64 exec, -1
        s_waitcnt vmcnt(0)
        s_memtime s[22:23]
        s_memrealtime s[40:41]
        s_waitcnt lgkmcnt(0)
        v_writelane_b32 v{VST}, s22, 61
        v_writelane_b32 v{VST}, s40, 63
        v_writelane_b32 v{VST}, s{sSPIN}, 59
        s_lshl_b32 s3, s2, 10
        s_add_u32 s3, s3, {STAMPS:#x}
        v_lshl_add_u32 v{T}, v0, 2, s3
        global_store_dword v{T}, v{VST}, {sr(pWS,2)}
        """)
    e("L_end:\ns_endpgm\nL_code_end:")
    return g

HEADER = open(f"cdna_kernels/{NAME}.s.ref").read().split("; Override launch geometry")[0]

def emit(o, path):
    g = build(o)
    errs = hazard.check(g.lines)
    for x in errs: print(x, file=sys.stderr)
    txt = HEADER
    txt += f"; @launch grid=(256,1,1) block=(256,1,1) lds={LDS_BYTES}\n"
    txt += f'.amdgcn_target "amdgcn-amd-amdhsa--gfx950"\n.text\n.globl {NAME}_kernel\n.p2align 12\n.type {NAME}_kernel,@function\n'
    txt += f".set CODE_BYTES, L_code_end - {NAME}_kernel\n"
    txt += "\n".join(g.lines) + "\n"
    txt += f'''.section .rodata,"a"
.p2align 6
.amdhsa_kernel {NAME}_kernel
  .amdhsa_next_free_vgpr {NVGPR}
  .amdhsa_next_free_sgpr 102
  .amdhsa_accum_offset {NVGPR}
  .amdhsa_group_segment_fixed_size 0
  .amdhsa_kernarg_size 88
  .amdhsa_user_sgpr_count 2
  .amdhsa_user_sgpr_kernarg_segment_ptr 1
  .amdhsa_system_sgpr_workgroup_id_x 1
  .amdhsa_float_denorm_mode_32 3
  .amdhsa_float_denorm_mode_16_64 3
.end_amdhsa_kernel
'''
    open(path, "w").write(txt)
    if o.stamps: open(path + ".names", "w").write("\n".join(g.names))
    return len(errs)

if __name__ == "__main__":
    ap = argparse.ArgumentParser()
    ap.add_argument("out")
    ap.add_argument("--stamps", action="store_true")
    ap.add_argument("--nt", type=int, default=1)
    ap.add_argument("--wqpol", default="nt")
    ap.add_argument("--outpol", default="")
    ap.add_argument("--vearly", type=int, default=4)
    ap.add_argument("--qwait", default="k0")
    ap.add_argument("--owait", default=None)
    ap.add_argument("--wolate", type=int, default=0)
    o = ap.parse_args()
    sys.exit(1 if emit(o, o.out) else 0)
```

```python
import sys, struct, argparse
sys.path.insert(0, "gen")
import hazard

NAME = "parallel_sum__sliding_block_cached__dense_activation_silu__decode"
def f2u(x): return struct.unpack("<I", struct.pack("<f", x))[0]
LOG2E = f2u(1.4426950408889634); SCALE = f2u(128 ** -0.5); EPS = f2u(1e-5)

OREC, AREC, BREC, QREC, HREC, MLREC, EPOCH = 0x0, 0x100000, 0x140000, 0x180000, 0x1A0000, 0x1C0000, 0x1C8000
STAMPS = 0x400000
L_RED, L_Q, L_ML, L_O, L_B, L_A = 0, 2048, 3072, 4096, 12288, 14336
LDS_BYTES = 16384
SPIN_LIMIT = 0x40000

class G:
    def __init__(s, opt):
        s.o = opt; s.lines = []; s.vm = []; s.nst = 0; s.lab = 0; s.names = []
    def e(s, t):
        for ln in t.strip("\n").split("\n"):
            if not ln.strip(): continue
            s.lines.append("    " + ln.strip() if not ln.strip().endswith(":") else ln.strip())
    def c(s, t): s.lines.append("    ; " + t)
    def vmem(s, t, name):
        s.e(t); s.vm.append(name)
    def cnt(s, name):
        idx = max(k for k, n in enumerate(s.vm) if n == name)
        return len(s.vm) - 1 - idx
    def wait(s, name, extra=""):
        s.e(f"s_waitcnt vmcnt({s.cnt(name)}) {extra}".strip())
    def stamp(s, label=""):
        if not s.o.stamps: return
        k = s.nst; s.nst += 1
        s.e(f"s_memtime s[{sST+2*k}:{sST+2*k+1}]")
        s.names.append(label)
    def label(s, base):
        s.lab += 1; return f"L_{base}_{s.lab}"

def r(b, n=1): return f"v{b}" if n == 1 else f"v[{b}:{b+n-1}]"
def sr(b, n=1): return f"s{b}" if n == 1 else f"s[{b}:{b+n-1}]"

TID, VL, VL16, VTAG = 0, 1, 2, 3
T = 4
X8, XQ, XH, DUM = 20, 24, 26, 27
WQ, W1 = 28, 44
W2, WO = 28, 36
K, V = 52, 84
TV = K
MLG, OG = 84, 100
D = 116
QG = 116
WOP = 116
HG = 22
S, PA, OACC = 148, 156, 172
Q = 172
AQ, AH = 148, 156
vKo, vVo, vW2o, vWOo, vWOo2, vPub, vRedW, vOW, vOG, vMLG, vFin, vTmp = range(180, 192)
vQrd, vOrd, vXres, vOut, vQG, vHG = 192, 193, 194, 195, 196, 197
VST = 198
NVGPR = 200
pX, pK, pV, pWQ, pWO, pW1, pW2, pOUT, pWS = 4, 6, 8, 10, 12, 16, 18, 20, 24
sG, sI, sW, sTAG, sLO, sHI = 26, 27, 28, 29, 30, 31
SB = 32
sM, sSC, sL2 = 32, 40, 42
sH = 44
sO = 32
sR, sSPIN, sXRES, sMLP = 22, 14, 15, 3
sST = 48

def dpp(g, v, ctrl, op="add"):
    g.e(f"v_{op}_f32_dpp v{v}, v{v}, v{v} {ctrl} bank_mask:0xf")

def wave_sum_to_sgpr(g, v, sd):
    for c in ("row_ror:8 row_mask:0xf", "row_ror:4 row_mask:0xf", "row_ror:2 row_mask:0xf", "row_ror:1 row_mask:0xf",
              "row_bcast:15 row_mask:0xa", "row_bcast:31 row_mask:0xc"):
        g.e("s_nop 1"); dpp(g, v, c)
    g.e(f"s_nop 0\nv_readlane_b32 s{sd}, v{v}, 63\ns_nop 1")

def bf16r(g, d, s_):
    g.e(f"v_cvt_pk_bf16_f32 v{d}, v{s_}, v{s_}\nv_lshlrev_b32 v{d}, 16, v{d}")

def xor_reduce(g, v, t, op, bits):
    for b in bits:
        sw = "v_permlane32_swap_b32" if b == 5 else "v_permlane16_swap_b32"
        g.e(f"v_mov_b32 v{t}, v{v}\ns_nop 1\n{sw} v{v}, v{t}\nv_{op}_f32 v{v}, v{v}, v{t}")

def check_retry(g, name, loads, tags, first_wait, init_mask=None):
    top = g.label(name); first = g.label(name + "f")
    if init_mask is None:
        g.e(f"s_mov_b64 s[{sR}:{sR+1}], -1")
    else:
        g.e(f"s_mov_b32 s{sR}, {init_mask & 0xffffffff:#x}\ns_mov_b32 s{sR+1}, {init_mask >> 32:#x}\ns_mov_b64 exec, s[{sR}:{sR+1}]")
    g.e(f"{first_wait}\ns_branch {first}\n{top}:")
    g.e(f"s_sub_u32 s{sSPIN}, s{sSPIN}, 1\ns_cbranch_scc1 L_end\ns_mov_b64 exec, s[{sR}:{sR+1}]")
    for l in loads: g.e(l)
    g.e(f"s_waitcnt vmcnt(0)\n{first}:")
    for t in tags: g.e(f"v_cmpx_eq_u32 vcc, v{VTAG}, v{t}")
    g.e(f"s_andn2_b64 s[{sR}:{sR+1}], s[{sR}:{sR+1}], exec\ns_cbranch_scc1 {top}\ns_mov_b64 exec, -1")

def build(o):
    g = G(o); e = g.e
    NT = "nt"
    e(f"{NAME}_kernel:")
    e("s_cmp_ge_u32 s2, 256\ns_cbranch_scc1 L_end")
    e("s_load_dwordx16 s[4:19], s[0:1], 0\ns_load_dwordx2 s[20:21], s[0:1], 64\ns_load_dwordx2 s[24:25], s[0:1], 80")
    if o.stamps:
        e(f"s_memrealtime s[100:101]"); g.stamp("start")
    if o.dbgspan:
        e("s_memrealtime s[100:101]\ns_load_dwordx2 s[98:99], s[0:1], 72\ns_memtime s[96:97]")
    g.c("prefetch this kernel's code into L2")
    e(f"s_getpc_b64 s[{sR}:{sR+1}]\nv_lshlrev_b32 v{T}, 5, v0\nv_min_u32 v{T}, CODE_BYTES-64, v{T}")
    g.vmem(f"global_load_dword v{DUM}, v{T}, s[{sR}:{sR+1}]", "code")
    e(f"""
    v_and_b32 v{VL}, 63, v0
    v_lshrrev_b32 v{T+1}, 6, v0
    s_and_b32 s{sG}, s2, 7
    s_lshr_b32 s{sI}, s2, 3
    v_readfirstlane_b32 s{sW}, v{T+1}
    v_lshlrev_b32 v{VL16}, 4, v{VL}
    s_min_u32 s32, s{sI}, 27
    s_mul_i32 s33, s{sG}, 28
    s_add_u32 s33, s33, s32            ; u
    s_lshr_b32 s34, s33, 2
    s_and_b32 s35, s33, 3
    s_lshr_b32 s39, s{sI}, 2
    s_and_b32 s40, s{sI}, 3
    v_lshrrev_b32 v{T+2}, 3, v0
    s_lshl_b32 s41, s40, 8
    v_lshl_add_u32 v{T+3}, v{T+2}, 3, s41
    v_lshrrev_b32 v{T+10}, 2, v0
    s_lshl_b32 s41, s35, 8
    v_lshl_add_u32 v{T+4}, v{T+10}, 2, s41
    s_lshl_b32 s41, s{sG}, 10
    s_lshl_b32 s42, s39, 7
    s_add_u32 s41, s41, s42
    s_lshl_b32 s42, s40, 20
    s_add_u32 s41, s41, s42
    v_and_b32 v{T+11}, 7, v0
    v_lshl_add_u32 v{T+5}, v{T+11}, 4, s41
    v_lshl_add_u32 v{T+5}, v{T+2}, 15, v{T+5}
    v_add_u32 v{T+6}, 0x2000, v{T+5}
    v_add_u32 v{T+7}, 0x4000, v{T+5}
    v_add_u32 v{T+8}, 0x6000, v{T+5}
    s_mul_i32 s41, s35, {128*3584}
    s_lshl_b32 s42, s34, 6
    s_add_u32 s41, s41, s42
    v_and_b32 v{T+12}, 3, v0
    v_lshlrev_b32 v{T+12}, 4, v{T+12}
    v_mul_u32_u24 v{T+9}, 7168, v{T+10}
    v_add3_u32 v{T+9}, v{T+9}, v{T+12}, s41    ; w1
    s_lshl_b32 s41, s{sG}, 24
    s_lshl_b32 s42, s{sI}, 15
    s_add_u32 s41, s41, s42
    s_add_u32 s41, s41, 0xF01000
    v_lshl_add_u32 v{vVo}, v{T+1}, 13, s41
    v_bfe_u32 v{T+13}, v0, 2, 2
    v_lshl_add_u32 v{vQrd}, v{T+13}, 8, v{T+12}
    v_bfe_u32 v{T+13}, v0, 4, 2
    v_lshl_add_u32 v{vQrd}, v{T+13}, 6, v{vQrd}
    v_add_u32 v{vKo}, v{vQrd}, v{vVo}
    v_add_u32 v{vVo}, v{VL16}, v{vVo}
    v_mov_b32 v{T+13}, {EPOCH:#x}
    v_mov_b32 v{T+14}, 0
    s_mov_b32 s{sLO}, 0x05040100
    s_mov_b32 s{sHI}, 0x07060302
    s_mov_b32 s36, {EPOCH:#x}
    s_lshl_b32 s37, s{sG}, 5
    s_add_u32 s37, s37, s{sI}           ; c' = 32g+i
    s_lshl_b32 s38, s37, 2
    s_waitcnt lgkmcnt(0)
    """)
    g.stamp("karg")
    g.vmem(f"global_load_dwordx4 {r(X8,4)}, v{VL16}, {sr(pX,2)}", "x")
    g.vmem(f"global_load_dwordx2 {r(XQ,2)}, v{T+3}, {sr(pX,2)}", "x")
    g.vmem(f"global_load_dword v{XH}, v{T+4}, {sr(pX,2)}", "x")
    for u in range(4):
        g.vmem(f"global_load_dwordx4 {r(WQ+4*u,4)}, v{T+5+u}, {sr(pWQ,2)} {NT}", "wq")
    for u in range(2):
        g.vmem(f"global_load_dwordx4 {r(W1+4*u,4)}, v{T+9}, {sr(pW1,2)} offset:{3584*u} {NT}", "w1")
    e(f"s_load_dword s{sTAG}, {sr(pWS,2)}, s36\ns_load_dword s{sXRES}, {sr(pX,2)}, s38")
    def kload(n):
        g.vmem(f"global_load_dwordx4 {r(K+4*n,4)}, v{vKo}, {sr(pK,2)} offset:{n*1024-4096} {NT}", f"k{n}")
    def vload(n):
        g.vmem(f"global_load_dwordx4 {r(V+4*n,4)}, v{vVo}, {sr(pV,2)} offset:{n*1024-4096} {NT}", f"v{n}")
    for n in range(o.k1): kload(n)
    g.c("warm the address translation of ws / out")
    g.vmem(f"global_load_dword v{DUM}, v{T+13}, {sr(pWS,2)}", "tlb")
    g.vmem(f"global_load_dword v{DUM}, v{T+14}, {sr(pOUT,2)}", "tlb")
    g.stamp("issued")
    g.c("addresses used later")
    e(f"""
    s_mov_b32 s{sSPIN}, {SPIN_LIMIT:#x}
    s_lshl_b32 s41, s34, 15
    s_lshl_b32 s42, s35, 8
    s_add_u32 s41, s41, s42
    s_add_u32 s41, s41, 4096
    v_lshlrev_b32 v{T+3}, 2, v{VL}
    v_lshl_add_u32 v{vW2o}, v{T+1}, 13, v{T+3}
    v_add_u32 v{vW2o}, s41, v{vW2o}
    s_lshl_b32 s44, s{sG}, 3
    s_add_u32 s44, s44, s39             ; p = 8g+a
    s_lshl_b32 s45, s44, 16
    s_lshl_b32 s46, s40, 8
    s_add_u32 s45, s45, s46
    s_add_u32 s45, s45, 4096
    v_lshl_add_u32 v{vWOo}, v{T+1}, 14, v{T+3}
    v_add_u32 v{vWOo}, s45, v{vWOo}
    v_add_u32 v{vWOo2}, 0x2000, v{vWOo}
    s_lshl_b32 s45, s40, 16
    s_lshl_b32 s46, s44, 10
    s_add_u32 s45, s45, s46
    s_add_u32 s45, s45, {AREC:#x}
    s_lshl_b32 s46, s35, 16
    s_lshl_b32 s47, s34, 10
    s_add_u32 s46, s46, s47
    s_add_u32 s46, s46, {BREC:#x}
    s_cmp_eq_u32 s{sW}, 0
    s_cselect_b32 s45, s45, s46
    v_add_u32 v{vFin}, s45, v{VL16}
    s_lshr_b32 s45, s{sG}, 1
    s_lshl_b32 s45, s45, 16
    s_and_b32 s46, s37, 63
    s_lshl_b32 s46, s46, 4
    s_add_u32 s45, s45, s46
    s_add_u32 s45, s45, {AREC:#x}
    v_lshl_add_u32 v{vTmp}, v{VL}, 10, s45
    s_cmp_eq_u32 s{sW}, 1
    s_cselect_b64 vcc, -1, 0
    v_cndmask_b32 v{vFin}, v{vFin}, v{vTmp}, vcc
    v_lshrrev_b32 v{vOut}, 5, v{VL}
    v_lshl_add_u32 v{vOut}, v{vOut}, 1, s38
    """)
    g.c("q/h partial publish address (lanes 0-31 q, 32-47 h), q/h gather addresses")
    e(f"""
    s_lshl_b32 s45, s{sG}, 14
    s_add_u32 s45, s45, {QREC:#x}
    v_lshl_add_u32 v{vQG}, v{T+1}, 12, s45
    v_add_u32 v{vQG}, v{VL16}, v{vQG}
    s_lshr_b32 s46, s39, 1
    s_lshl_b32 s46, s46, 12
    s_add_u32 s45, s45, s46
    s_lshl_b32 s46, s40, 10
    s_add_u32 s45, s45, s46
    s_and_b32 s46, s39, 1
    s_lshl_b32 s46, s46, 9
    s_add_u32 s45, s45, s46
    s_lshl_b32 s46, s33, 8
    s_add_u32 s46, s46, {HREC-512:#x}
    v_mov_b32 v{T+4}, s45
    v_mov_b32 v{T+5}, s46
    v_cmp_lt_u32 vcc, 31, v{VL}
    s_lshl_b32 s47, s34, 10
    s_add_u32 s47, s47, {HREC:#x}
    v_cndmask_b32 v{vPub}, v{T+4}, v{T+5}, vcc
    v_add_u32 v{vPub}, v{VL16}, v{vPub}
    v_lshl_add_u32 v{vHG}, v{T+1}, 6, s47
    v_lshl_add_u32 v{vHG}, v{T+11}, 3, v{vHG}
    v_bfe_u32 v{T+4}, v0, 3, 2
    v_lshl_add_u32 v{vHG}, v{T+4}, 8, v{vHG}
    """)
    g.c("LDS address for GEMV partials: w*512 + (8*(l&7) + 2*bit4 + bit5)*4")
    e(f"""
    v_lshlrev_b32 v{vRedW}, 5, v{T+11}
    v_bfe_u32 v{T+4}, v0, 4, 1
    v_lshl_add_u32 v{vRedW}, v{T+4}, 3, v{vRedW}
    v_bfe_u32 v{T+4}, v0, 5, 1
    v_lshl_add_u32 v{vRedW}, v{T+4}, 2, v{vRedW}
    v_lshl_add_u32 v{vRedW}, v{T+1}, 9, v{vRedW}
    s_lshl_b32 s45, s{sG}, 17
    s_lshl_b32 s46, s{sI}, 7
    s_add_u32 s46, s46, s45
    v_lshl_add_u32 v{vOW}, v{T+2}, 12, s46
    v_lshl_add_u32 v{vOW}, v{T+11}, 4, v{vOW}
    s_lshl_b32 s46, s39, 14
    s_add_u32 s46, s46, s45
    v_lshl_add_u32 v{vOG}, v{T+1}, 12, s46
    v_add_u32 v{vOG}, v{VL16}, v{vOG}
    s_lshr_b32 s46, s44, 1
    s_lshl_b32 s46, s46, 9
    s_add_u32 s46, s46, {MLREC:#x}
    v_lshrrev_b32 v{T+4}, 3, v{VL}
    v_lshl_add_u32 v{vMLG}, v{T+4}, 4, s46
    v_lshlrev_b32 v{vOrd}, 4, v{T+10}
    v_bfe_u32 v{T+4}, v0, 1, 1
    v_lshl_add_u32 v{vOrd}, v{T+4}, 10, v{vOrd}
    v_and_b32 v{T+4}, 1, v0
    v_lshl_add_u32 v{vOrd}, v{T+4}, 3, v{vOrd}
    v_lshlrev_b32 v{vTmp}, 3, v{VL}
    s_lshl_b32 s45, s{sG}, 2
    s_add_u32 s45, s45, s{sW}
    s_lshl_b32 s45, s45, 5
    s_add_u32 s45, s45, s{sI}
    s_lshl_b32 s45, s45, 4
    s_add_u32 s{sMLP}, s45, {MLREC:#x}
    """)
    for k in range(4): e(f"s_mov_b32 s{sM+2*k}, {0x11111111 << k:#x}\ns_mov_b32 s{sM+2*k+1}, {0x11111111 << k:#x}")
    e(f"s_mov_b32 s{sSC}, {SCALE:#x}\ns_mov_b32 s{sSC+1}, {SCALE:#x}\ns_mov_b32 s{sL2}, {LOG2E:#x}\ns_mov_b32 s{sL2+1}, {LOG2E:#x}")
    g.c("layernorm statistics")
    g.wait("x")
    g.stamp("x")
    U = T
    for d in range(4):
        e(f"v_lshlrev_b32 v{U+2*d}, 16, v{X8+d}\nv_and_b32 v{U+2*d+1}, 0xffff0000, v{X8+d}")
    e(f"""
    v_pk_add_f32 {r(T+8,2)}, {r(U,2)}, {r(U+2,2)}
    v_pk_add_f32 {r(T+10,2)}, {r(U+4,2)}, {r(U+6,2)}
    v_pk_add_f32 {r(T+8,2)}, {r(T+8,2)}, {r(T+10,2)}
    v_add_f32 v{T+8}, v{T+8}, v{T+9}
    """)
    wave_sum_to_sgpr(g, T+8, 44)
    e(f"v_mov_b32 v{T+12}, 0x3b000000\nv_mul_f32 v{T+10}, s44, v{T+12}")
    for d in range(4):
        e(f"v_pk_add_f32 {r(U+2*d,2)}, {r(U+2*d,2)}, {r(T+10,2)} op_sel_hi:[1,0] neg_lo:[0,1] neg_hi:[0,1]")
    e(f"v_pk_mul_f32 {r(T+8,2)}, {r(U,2)}, {r(U,2)}")
    for d in range(1, 4):
        e(f"v_pk_fma_f32 {r(T+8,2)}, {r(U+2*d,2)}, {r(U+2*d,2)}, {r(T+8,2)}")
    e(f"v_add_f32 v{T+8}, v{T+8}, v{T+9}")
    wave_sum_to_sgpr(g, T+8, 44)
    e(f"v_mul_f32 v{T+11}, s44, v{T+12}")
    bf16r(g, T+10, T+10)
    bf16r(g, T+11, T+11)
    e(f"v_add_f32 v{T+11}, {EPS:#x}, v{T+11}")
    bf16r(g, T+11, T+11)
    e(f"v_sqrt_f32 v{T+11}, v{T+11}\ns_nop 0")
    bf16r(g, T+11, T+11)
    e(f"v_rcp_f32 v{T+12}, v{T+11}")
    for k, x in enumerate((XQ, XQ+1, XH)):
        a = U + 2*k
        e(f"""
        v_lshlrev_b32 v{a}, 16, v{x}
        v_and_b32 v{a+1}, 0xffff0000, v{x}
        v_pk_add_f32 {r(a,2)}, {r(a,2)}, {r(T+10,2)} op_sel_hi:[1,0] neg_lo:[0,1] neg_hi:[0,1]
        v_cvt_pk_bf16_f32 v{x}, v{a}, v{a+1}
        v_lshlrev_b32 v{a}, 16, v{x}
        v_and_b32 v{a+1}, 0xffff0000, v{x}
        v_pk_mul_f32 {r(a,2)}, {r(a,2)}, {r(T+12,2)} op_sel_hi:[1,0]
        v_cvt_pk_bf16_f32 v{x}, v{a}, v{a+1}
        """)
    g.stamp("ln")
    for n in range(o.k1, 8): kload(n)
    g.c("q and h partial slices")
    g.wait("wq")
    g.stamp("wq")
    for half in range(2):
        for d in range(4):
            a, b = WQ + 8*half + d, WQ + 8*half + 4 + d
            e(f"v_perm_b32 v{T+2*d}, v{b}, v{a}, s{sLO}\nv_perm_b32 v{T+2*d+1}, v{b}, v{a}, s{sHI}")
        for k in range(8):
            e(f"v_dot2_f32_bf16 v{AQ+k}, v{T+k}, v{XQ+half}, {'0' if half == 0 else 'v%d' % (AQ+k)}")
    g.wait("w1")
    g.stamp("w1")
    for d in range(4):
        a, b = W1 + d, W1 + 4 + d
        e(f"v_perm_b32 v{T+2*d}, v{b}, v{a}, s{sLO}\nv_perm_b32 v{T+2*d+1}, v{b}, v{a}, s{sHI}")
    for k in range(8):
        e(f"v_dot2_f32_bf16 v{AH+k}, v{T+k}, v{XH}, 0")
    for A in (AQ, AH):
        for k in range(0, 8, 2): e(f"v_permlane32_swap_b32 v{A+k}, v{A+k+1}")
    for A in (AQ, AH):
        for k in range(0, 8, 2): e(f"v_add_f32 v{A+k}, v{A+k}, v{A+k+1}")
    for A in (AQ, AH):
        for k in (0, 4): e(f"v_permlane16_swap_b32 v{A+k}, v{A+k+2}")
    for A in (AH, AQ):
        for k in (0, 4): e(f"v_add_f32 v{A+k}, v{A+k}, v{A+k+2}")
    for v in (AH, AH+4, AQ, AQ+4): dpp(g, v, "row_ror:8 row_mask:0xf")
    for v in (AH, AH+4): dpp(g, v, "row_ror:4 row_mask:0xf")
    e(f"""
    s_mov_b32 exec_lo, 0x00ff00ff
    s_mov_b32 exec_hi, 0x00ff00ff
    ds_write2_b32 v{vRedW}, v{AQ}, v{AQ+4} offset0:0 offset1:4
    s_mov_b32 exec_lo, 0x000f000f
    s_mov_b32 exec_hi, 0x000f000f
    ds_write2_b32 v{vRedW}, v{AH}, v{AH+4} offset0:64 offset1:68
    s_mov_b64 exec, -1
    s_waitcnt lgkmcnt(0)
    s_barrier
    s_mul_i32 s{sTAG}, s{sTAG}, 0x9E3779B1
    s_add_u32 s{sTAG}, s{sTAG}, 0x7F4A7C15
    s_cmp_lg_u32 s{sW}, 0
    s_cbranch_scc1 L_noq
    ds_read2st64_b64 {r(T,4)}, v{vTmp} offset0:0 offset1:1
    ds_read2st64_b64 {r(T+4,4)}, v{vTmp} offset0:2 offset1:3
    v_mov_b32 v{T+13}, s{sTAG}
    v_mov_b32 v{T+15}, s{sTAG}
    s_mov_b32 exec_hi, 0xffff
    s_waitcnt lgkmcnt(0)
    v_pk_add_f32 {r(T,2)}, {r(T,2)}, {r(T+2,2)}
    v_pk_add_f32 {r(T+4,2)}, {r(T+4,2)}, {r(T+6,2)}
    v_add_f32 v{T+12}, v{T}, v{T+4}
    v_add_f32 v{T+14}, v{T+1}, v{T+5}
    global_store_dwordx4 v{vPub}, {r(T+12,4)}, {sr(pWS,2)} sc1
    s_mov_b64 exec, -1
    L_noq:
    """)
    g.stamp("qpub")
    for n in range(o.v1): vload(n)
    e(f"""
    v_mov_b32 v{VTAG}, s{sTAG}
    v_cmp_gt_u32 vcc, 32, v{VL}
    s_lshl_b32 s45, s{sXRES}, 16
    s_and_b32 s46, s{sXRES}, 0xffff0000
    v_mov_b32 v{T}, s45
    v_mov_b32 v{T+1}, s46
    v_cndmask_b32 v{vXres}, v{T+1}, v{T}, vcc
    """)
    g.wait(o.qwait)
    g.stamp("qwait")
    q_loads = [f"global_load_dwordx4 {r(QG+4*u,4)}, v{vQG}, {sr(pWS,2)} offset:{1024*u} sc1" for u in range(4)]
    q_loads.append(f"global_load_dwordx2 {r(HG,2)}, v{vHG}, {sr(pWS,2)} sc1")
    for ld in q_loads: g.vmem(ld, "qg")
    for n in range(o.v1, 8): vload(n)
    def w2load():
        for n in range(8):
            g.vmem(f"global_load_dword v{W2+n}, v{vW2o}, {sr(pW2,2)} offset:{n*1024-4096} {NT}", "w2")
    def woload():
        for n in range(16):
            g.vmem(f"global_load_dword v{WO+n}, v{vWOo if n < 8 else vWOo2}, {sr(pWO,2)} offset:{(n & 7)*1024-4096} {NT}", f"wo{n}")
    if o.wpos == 0:
        if o.wwait: g.wait(o.wwait)
        w2load(); woload()
    g.stamp("wiss")
    check_retry(g, "q", q_loads, [QG+4*u+k for u in range(4) for k in (1, 3)] + [HG+1], f"s_waitcnt vmcnt({g.cnt('qg')})")
    g.stamp("qgot")
    e(f"""
    v_add_f32 v{T}, v{QG}, v{QG+4}
    v_add_f32 v{T+1}, v{QG+2}, v{QG+6}
    v_add_f32 v{T+2}, v{QG+8}, v{QG+12}
    v_add_f32 v{T+3}, v{QG+10}, v{QG+14}
    v_lshlrev_b32 v{T+4}, 2, v0
    v_pk_add_f32 {r(T,2)}, {r(T,2)}, {r(T+2,2)}
    v_cvt_pk_bf16_f32 v{T}, v{T}, v{T+1}
    ds_write_b32 v{T+4}, v{T} offset:{L_Q}
    v_bfe_u32 v{T+14}, v0, 2, 2
    v_lshlrev_b32 v{T+14}, 5, v{T+14}
    s_lshl_b32 s45, s{sW}, 3
    v_add_u32 v{T+15}, s45, v{T+14}
    s_waitcnt lgkmcnt(0)
    s_barrier
    ds_read_b128 {r(Q,4)}, v{vQrd} offset:{L_Q}
    """)
    g.wait("k7", "lgkmcnt(0)")
    for n in range(8): e(f"v_mfma_f32_16x16x32_bf16 {r(D+4*n,4)}, {r(K+4*n,4)}, {r(Q,4)}, 0")
    if o.wpos == 1: w2load(); woload()
    else: e("s_nop 0")
    for c in range(4):
        for n in range(8):
            if c == 0: e(f"v_mov_b32_dpp v{S+n}, v{D+4*n} quad_perm:[0,0,0,0] row_mask:0xf bank_mask:0xf")
            else: e(f"v_add_f32_dpp v{S+n}, v{D+4*n+c}, v{S+n} quad_perm:[{c},{c},{c},{c}] row_mask:0xf bank_mask:0xf")
    g.stamp("qk")
    for n in range(4):
        a = S + 2*n
        e(f"""
        v_cvt_pk_bf16_f32 v{T}, v{a}, v{a+1}
        v_lshlrev_b32 v{a}, 16, v{T}
        v_and_b32 v{a+1}, 0xffff0000, v{T}
        v_pk_mul_f32 {r(a,2)}, {r(a,2)}, {sr(sSC,2)}
        v_cvt_pk_bf16_f32 v{T}, v{a}, v{a+1}
        v_lshlrev_b32 v{a}, 16, v{T}
        v_and_b32 v{a+1}, 0xffff0000, v{T}
        """)
    m, l = T+2, T+3
    e(f"""
    v_max3_f32 v{m}, v{S}, v{S+1}, v{S+2}
    v_max3_f32 v{T}, v{S+3}, v{S+4}, v{S+5}
    v_max3_f32 v{m}, v{m}, v{S+6}, v{S+7}
    v_max_f32 v{m}, v{m}, v{T}
    """)
    xor_reduce(g, m, T, "max", (5, 4))
    for n in range(4):
        a = S + 2*n
        e(f"v_pk_add_f32 {r(a,2)}, {r(a,2)}, {r(m,2)} op_sel_hi:[1,0] neg_lo:[0,1] neg_hi:[0,1]")
    for n in range(4):
        a = S + 2*n
        e(f"v_pk_mul_f32 {r(a,2)}, {r(a,2)}, {sr(sL2,2)}")
    for k in range(8): e(f"v_exp_f32 v{S+k}, v{S+k}")
    e(f"""
    s_nop 0
    v_pk_add_f32 {r(T,2)}, {r(S,2)}, {r(S+2,2)}
    v_pk_add_f32 {r(T+4,2)}, {r(S+4,2)}, {r(S+6,2)}
    v_pk_add_f32 {r(T,2)}, {r(T,2)}, {r(T+4,2)}
    v_add_f32 v{l}, v{T}, v{T+1}
    """)
    xor_reduce(g, l, T, "add", (5, 4))
    e(f"""
    s_mov_b64 exec, 0x1111
    ds_write_b64 v{T+15}, {r(m,2)} offset:{L_ML}
    s_mov_b64 exec, -1
    s_lshl_b32 s45, s{sW}, 2
    s_waitcnt lgkmcnt(0)
    s_barrier
    ds_read_b128 {r(T+4,4)}, v{T+14} offset:{L_ML}
    ds_read_b128 {r(T+8,4)}, v{T+14} offset:{L_ML+16}
    s_waitcnt lgkmcnt(0)
    v_max3_f32 v{T+12}, v{T+4}, v{T+6}, v{T+8}
    v_max_f32 v{T+12}, v{T+12}, v{T+10}
    v_sub_f32 v{m}, v{m}, v{T+12}
    v_sub_f32 v{T+4}, v{T+4}, v{T+12}
    v_sub_f32 v{T+6}, v{T+6}, v{T+12}
    v_sub_f32 v{T+8}, v{T+8}, v{T+12}
    v_sub_f32 v{T+10}, v{T+10}, v{T+12}
    v_mul_f32 v{m}, s{sL2}, v{m}
    v_mul_f32 v{T+4}, s{sL2}, v{T+4}
    v_mul_f32 v{T+6}, s{sL2}, v{T+6}
    v_mul_f32 v{T+8}, s{sL2}, v{T+8}
    v_mul_f32 v{T+10}, s{sL2}, v{T+10}
    v_exp_f32 v{m}, v{m}
    v_exp_f32 v{T+4}, v{T+4}
    v_exp_f32 v{T+6}, v{T+6}
    v_exp_f32 v{T+8}, v{T+8}
    v_exp_f32 v{T+10}, v{T+10}
    v_mul_f32 v{T+14}, v{T+4}, v{T+5}
    v_fmac_f32 v{T+14}, v{T+6}, v{T+7}
    v_fmac_f32 v{T+14}, v{T+8}, v{T+9}
    v_fmac_f32 v{T+14}, v{T+10}, v{T+11}
    v_mov_b32 v{T+13}, s{sTAG}
    v_mov_b32 v{T+15}, s{sTAG}
    v_mov_b32 v{T}, s{sMLP}
    s_lshl_b64 exec, 1, s45
    """)
    g.vmem(f"global_store_dwordx4 v{T}, {r(T+12,4)}, {sr(pWS,2)} sc1", "mlpub")
    e("s_mov_b64 exec, -1")
    for n in range(4):
        a = S + 2*n
        e(f"v_pk_mul_f32 {r(a,2)}, {r(a,2)}, {r(m,2)} op_sel_hi:[1,0]")
    for n in range(4): e(f"v_cvt_pk_bf16_f32 v{T+4+n}, v{S+2*n}, v{S+2*n+1}")
    for rho in range(4):
        for n in range(4): e(f"v_cndmask_b32 v{PA+4*rho+n}, 0, v{T+4+n}, {sr(sM+2*rho,2)}")
    e(f"s_lshl_b32 s45, s{sW}, 11\nv_add_u32 v{T+8}, s45, v{VL16}")
    g.stamp("p")
    def vperm(n, ee):
        d = ee >> 1
        e(f"v_perm_b32 v{TV+4*ee+n}, v{V+4*(2*n+1)+d}, v{V+4*(2*n)+d}, s{sHI if ee & 1 else sLO}")
    for n in range(3):
        g.wait(f"v{2*n+1}")
        for ee in range(8): vperm(n, ee)
    g.wait("v7")
    g.stamp("v")
    def pv(ee):
        acc = OACC + 4*(ee >> 2)
        e(f"v_mfma_f32_16x16x32_bf16 {r(acc,4)}, {r(PA+4*(ee&3),4)}, {r(TV+4*ee,4)}, {'0' if ee & 3 == 0 else r(acc,4)}")
    for ee in range(3): vperm(3, ee)
    for ee in range(8):
        pv(ee)
        if ee + 3 < 8: vperm(3, ee + 3)
    e(f"""
    s_nop 3
    ds_write_b128 v{T+8}, {r(OACC,4)} offset:{L_O}
    s_nop 2
    ds_write_b128 v{T+8}, {r(OACC+4,4)} offset:{L_O+1024}
    s_waitcnt lgkmcnt(0)
    s_barrier
    ds_read2st64_b64 {r(T,4)}, v{vOrd} offset0:{L_O//512} offset1:{L_O//512+4}
    ds_read2st64_b64 {r(T+4,4)}, v{vOrd} offset0:{L_O//512+8} offset1:{L_O//512+12}
    s_waitcnt lgkmcnt(0)
    v_pk_add_f32 {r(T,2)}, {r(T,2)}, {r(T+2,2)}
    v_pk_add_f32 {r(T+4,2)}, {r(T+4,2)}, {r(T+6,2)}
    v_add_f32 v{T+12}, v{T}, v{T+4}
    v_add_f32 v{T+14}, v{T+1}, v{T+5}
    """)
    g.vmem(f"global_store_dwordx4 v{vOW}, {r(T+12,4)}, {sr(pWS,2)} sc1", "opub")
    g.stamp("opub")
    ml_loads = [f"global_load_dwordx4 {r(MLG+4*u,4)}, v{vMLG}, {sr(pWS,2)} offset:{128*u} sc1" for u in range(4)]
    o_loads = [f"global_load_dwordx4 {r(OG+4*u,4)}, v{vOG}, {sr(pWS,2)} offset:{1024*u} sc1" for u in range(4)]
    for ld in ml_loads: g.vmem(ld, "ml")
    g.c("h = silu(sum of 4 partials)")
    dpp(g, HG, "row_ror:8 row_mask:0xf")
    xor_reduce(g, HG, T, "add", (4,))
    bf16r(g, HG, HG)
    e(f"""
    v_mul_f32 v{T}, {LOG2E | 0x80000000:#x}, v{HG}
    v_exp_f32 v{T}, v{T}
    s_nop 0
    v_add_f32 v{T}, 1.0, v{T}
    v_rcp_f32 v{T}, v{T}
    s_nop 0
    v_mul_f32 v{HG}, v{HG}, v{T}
    s_nop 1
    v_mov_b32_dpp v{T}, v{HG} quad_perm:[1,0,3,2] row_mask:0xf bank_mask:0xf
    v_cvt_pk_bf16_f32 v{HG}, v{HG}, v{T}
    s_nop 0
    """)
    for n in range(4): e(f"v_readlane_b32 s{sH+n}, v{HG}, {2*n}")
    g.wait("w2")
    g.stamp("w2")
    for n in range(4):
        e(f"v_perm_b32 v{T+2*n}, v{W2+2*n+1}, v{W2+2*n}, s{sLO}\nv_perm_b32 v{T+2*n+1}, v{W2+2*n+1}, v{W2+2*n}, s{sHI}")
    for n in range(4):
        for c in range(2):
            e(f"v_dot2_f32_bf16 v{T+8+c}, v{T+2*n+c}, s{sH+n}, {'0' if n == 0 else 'v%d' % (T+8+c)}")
    e(f"""
    v_lshlrev_b32 v{T+10}, 3, v0
    s_nop 1
    ds_write_b64 v{T+10}, {r(T+8,2)} offset:{L_B}
    s_waitcnt lgkmcnt(0)
    s_barrier
    s_cmp_lg_u32 s{sW}, 3
    s_cbranch_scc1 L_nob
    ds_read2st64_b64 {r(T,4)}, v{vTmp} offset0:{L_B//512} offset1:{L_B//512+1}
    ds_read2st64_b64 {r(T+4,4)}, v{vTmp} offset0:{L_B//512+2} offset1:{L_B//512+3}
    s_waitcnt lgkmcnt(0)
    v_pk_add_f32 {r(T,2)}, {r(T,2)}, {r(T+2,2)}
    v_pk_add_f32 {r(T+4,2)}, {r(T+4,2)}, {r(T+6,2)}
    v_add_f32 v{T+12}, v{T}, v{T+4}
    v_add_f32 v{T+14}, v{T+1}, v{T+5}
    global_store_dwordx4 v{vFin}, {r(T+12,4)}, {sr(pWS,2)} sc1
    L_nob:
    """)
    g.stamp("bpub")
    if o.owait: g.wait(o.owait)
    for ld in o_loads: g.vmem(ld, "o")
    g.wait("wo15")
    g.stamp("wo")
    for n in range(8):
        e(f"v_perm_b32 v{WOP+2*n}, v{WO+2*n+1}, v{WO+2*n}, s{sLO}\nv_perm_b32 v{WOP+2*n+1}, v{WO+2*n+1}, v{WO+2*n}, s{sHI}")
    g.c("softmax weights of the 32 splits")
    check_retry(g, "ml", ml_loads, [MLG+4*u+k for u in range(4) for k in (1, 3)], f"s_waitcnt vmcnt({g.cnt('ml')})")
    M_, L_ = T, T+1
    e(f"""
    v_max3_f32 v{M_}, v{MLG}, v{MLG+4}, v{MLG+8}
    v_max_f32 v{M_}, v{M_}, v{MLG+12}
    s_nop 1
    v_max_f32_dpp v{M_}, v{M_}, v{M_} row_ror:8 row_mask:0xf bank_mask:0xf
    """)
    xor_reduce(g, M_, T+2, "max", (5, 4))
    for u in range(4): e(f"v_sub_f32 v{MLG+4*u}, v{MLG+4*u}, v{M_}")
    for u in range(4): e(f"v_mul_f32 v{MLG+4*u}, s{sL2}, v{MLG+4*u}")
    for u in range(4): e(f"v_exp_f32 v{MLG+4*u}, v{MLG+4*u}")
    e(f"v_mul_f32 v{L_}, v{MLG}, v{MLG+2}")
    for u in range(1, 4): e(f"v_fmac_f32 v{L_}, v{MLG+4*u}, v{MLG+4*u+2}")
    e(f"s_nop 1\nv_add_f32_dpp v{L_}, v{L_}, v{L_} row_ror:8 row_mask:0xf bank_mask:0xf")
    xor_reduce(g, L_, T+2, "add", (5, 4))
    e(f"v_rcp_f32 v{L_}, v{L_}\ns_nop 0")
    for u in range(4): e(f"v_mul_f32 v{MLG+4*u}, v{MLG+4*u}, v{L_}")
    g.stamp("wgt")
    check_retry(g, "o", o_loads, [OG+4*u+k for u in range(4) for k in (1, 3)], "s_waitcnt vmcnt(0)")
    g.stamp("ogot")
    a0, a1 = T, T+1
    e(f"v_mul_f32 v{a0}, v{MLG}, v{OG}\nv_mul_f32 v{a1}, v{MLG}, v{OG+2}")
    for u in range(1, 4): e(f"v_fmac_f32 v{a0}, v{MLG+4*u}, v{OG+4*u}\nv_fmac_f32 v{a1}, v{MLG+4*u}, v{OG+4*u+2}")
    e(f"""
    s_nop 1
    v_permlane32_swap_b32 v{a0}, v{a1}
    v_add_f32 v{a0}, v{a0}, v{a1}
    s_nop 1
    v_add_f32_dpp v{a0}, v{a0}, v{a0} row_ror:8 row_mask:0xf bank_mask:0xf
    v_mov_b32 v{a1}, v{a0}
    s_nop 1
    v_permlane16_swap_b32 v{a0}, v{a1}
    v_add_f32 v{a0}, v{a0}, v{a1}
    v_mov_b32 v{a1}, v{a0}
    s_nop 1
    v_permlane32_swap_b32 v{a0}, v{a1}
    v_cvt_pk_bf16_f32 v{a0}, v{a0}, v{a1}
    s_nop 0
    """)
    for n in range(8): e(f"v_readlane_b32 s{sO+n}, v{a0}, {n}")
    for n in range(8):
        for c in range(2):
            e(f"v_dot2_f32_bf16 v{T+8+c}, v{WOP+2*n+c}, s{sO+n}, {'0' if n == 0 else 'v%d' % (T+8+c)}")
    e(f"""
    s_nop 2
    ds_write_b64 v{T+10}, {r(T+8,2)} offset:{L_A}
    s_waitcnt lgkmcnt(0)
    s_barrier
    s_cmp_eq_u32 s{sW}, 1
    s_cbranch_scc1 L_final
    s_cmp_lg_u32 s{sW}, 0
    s_cbranch_scc1 L_out
    ds_read2st64_b64 {r(T,4)}, v{vTmp} offset0:{L_A//512} offset1:{L_A//512+1}
    ds_read2st64_b64 {r(T+4,4)}, v{vTmp} offset0:{L_A//512+2} offset1:{L_A//512+3}
    s_waitcnt lgkmcnt(0)
    v_pk_add_f32 {r(T,2)}, {r(T,2)}, {r(T+2,2)}
    v_pk_add_f32 {r(T+4,2)}, {r(T+4,2)}, {r(T+6,2)}
    v_add_f32 v{T+12}, v{T}, v{T+4}
    v_add_f32 v{T+14}, v{T+1}, v{T+5}
    global_store_dwordx4 v{vFin}, {r(T+12,4)}, {sr(pWS,2)} sc1
    """)
    g.stamp("apub")
    e("s_branch L_out\nL_final:")
    def final_reduce(dst, src):
        e(f"""
        s_nop 1
        v_permlane32_swap_b32 v{src}, v{src+2}
        v_add_f32 v{dst}, v{src}, v{src+2}
        v_mov_b32 v{src+2}, v{dst}
        s_nop 1
        v_permlane16_swap_b32 v{dst}, v{src+2}
        v_add_f32 v{dst}, v{dst}, v{src+2}
        """)
        for c in (8, 4, 2, 1):
            e("s_nop 1"); dpp(g, dst, f"row_ror:{c} row_mask:0xf")
    b_loads = [f"global_load_dwordx4 {r(T+4,4)}, v{vTmp}, {sr(pWS,2)} sc1"]
    a_loads = [f"global_load_dwordx4 {r(T+8,4)}, v{vFin}, {sr(pWS,2)} sc1"]
    e(f"v_add_u32 v{vTmp}, {BREC-AREC:#x}, v{vFin}\nv_mov_b32 v{T+4}, 0\nv_mov_b32 v{T+6}, 0\ns_mov_b32 exec_hi, 0xffffff")
    e(b_loads[0])
    check_retry(g, "b", b_loads, [T+5, T+7], "s_waitcnt vmcnt(0)", init_mask=(1 << 56) - 1)
    e(a_loads[0])
    final_reduce(T, T+4)
    bf16r(g, T, T)
    g.stamp("bgot")
    check_retry(g, "a", a_loads, [T+9, T+11], "s_waitcnt vmcnt(0)")
    g.stamp("agot")
    final_reduce(T+1, T+8)
    dbg = ""
    if o.dbgspan:
        dbg = f'''s_waitcnt vmcnt(0)
        s_memrealtime s[94:95]
        s_memtime s[92:93]
        s_waitcnt lgkmcnt(0)
        s_mov_b32 exec_hi, 0
        s_not_b32 s91, s100
        s_sub_u32 s90, s92, s96
        v_mov_b32 v{T+2}, 0
        v_mov_b32 v{T+3}, s91
        v_mov_b32 v{T+4}, s94
        v_mov_b32 v{T+5}, s100
        v_mov_b32 v{T+6}, s90
        global_atomic_umax v{T+2}, v{T+3}, s[98:99]
        global_atomic_umax v{T+2}, v{T+4}, s[98:99] offset:4
        global_atomic_umax v{T+2}, v{T+5}, s[98:99] offset:8
        global_atomic_umax v{T+2}, v{T+6}, s[98:99] offset:12'''
    bf16r(g, T+1, T+1)
    e(f"v_add_f32 v{T+1}, v{vXres}, v{T+1}")
    bf16r(g, T+1, T+1)
    e(f"""
    v_add_f32 v{T+1}, v{T+1}, v{T}
    v_cvt_pk_bf16_f32 v{T+1}, v{T+1}, v{T+1}
    s_mov_b32 exec_lo, 1
    s_mov_b32 exec_hi, 1
    global_store_short v{vOut}, v{T+1}, {sr(pOUT,2)} {o.outpol}
    {dbg}
    s_cmp_lg_u32 s2, 0
    s_cbranch_scc1 L_out
    v_mov_b32 v{T+2}, {EPOCH:#x}
    global_store_dword v{T+2}, v{VTAG}, {sr(pWS,2)} sc1
    L_out:
    """)
    if o.stamps:
        assert sST + 2*g.nst <= 98, g.nst
        e(f"""
        s_mov_b64 exec, -1
        s_waitcnt vmcnt(0)
        s_memtime s[98:99]
        s_memrealtime s[46:47]
        v_mov_b32 v{VST}, 0
        s_waitcnt lgkmcnt(0)
        """)
        for k in range(g.nst): e(f"v_writelane_b32 v{VST}, s{sST+2*k}, {k}")
        e(f"""
        v_writelane_b32 v{VST}, s98, 61
        v_writelane_b32 v{VST}, s100, 62
        v_writelane_b32 v{VST}, s46, 63
        v_writelane_b32 v{VST}, s{sSPIN}, 59
        s_lshl_b32 s45, s2, 10
        s_add_u32 s45, s45, {STAMPS:#x}
        v_lshl_add_u32 v{T}, v0, 2, s45
        global_store_dword v{T}, v{VST}, {sr(pWS,2)}
        """)
    e("L_end:\ns_endpgm\nL_code_end:")
    if o.stamps:
        z = [f"    s_mov_b32 s{sST+2*k}, 0" for k in range(g.nst - 3, g.nst)]
        g.lines[3:3] = z
    return g

HEADER = open(f"cdna_kernels/{NAME}.s.ref").read().split("; Override launch geometry")[0]

def emit(o, path):
    g = build(o)
    errs = hazard.check(g.lines)
    for x in errs: print(x, file=sys.stderr)
    txt = HEADER
    txt += f"; @launch grid=(256,1,1) block=(256,1,1) lds={LDS_BYTES}\n"
    txt += f'.amdgcn_target "amdgcn-amd-amdhsa--gfx950"\n.text\n.globl {NAME}_kernel\n.p2align 12\n.type {NAME}_kernel,@function\n'
    txt += f".set CODE_BYTES, L_code_end - {NAME}_kernel\n"
    txt += "\n".join(g.lines) + "\n"
    txt += f'''.section .rodata,"a"
.p2align 6
.amdhsa_kernel {NAME}_kernel
  .amdhsa_next_free_vgpr {NVGPR}
  .amdhsa_next_free_sgpr 102
  .amdhsa_accum_offset {NVGPR}
  .amdhsa_group_segment_fixed_size 0
  .amdhsa_kernarg_size 88
  .amdhsa_user_sgpr_count 2
  .amdhsa_user_sgpr_kernarg_segment_ptr 1
  .amdhsa_system_sgpr_workgroup_id_x 1
  .amdhsa_float_denorm_mode_32 3
  .amdhsa_float_denorm_mode_16_64 3
.end_amdhsa_kernel
'''
    open(path, "w").write(txt)
    if o.stamps: open(path + ".names", "w").write("\n".join(g.names))
    return len(errs)

if __name__ == "__main__":
    ap = argparse.ArgumentParser()
    ap.add_argument("out")
    ap.add_argument("--stamps", action="store_true")
    ap.add_argument("--outpol", default="")
    ap.add_argument("--dbgspan", action="store_true")
    ap.add_argument("--k1", type=int, default=4)
    ap.add_argument("--v1", type=int, default=4)
    ap.add_argument("--qwait", default="k5")
    ap.add_argument("--wpos", type=int, default=0)
    ap.add_argument("--wwait", default="")
    ap.add_argument("--owait", default="")
    o = ap.parse_args()
    sys.exit(1 if emit(o, o.out) else 0)
```

```python
import sys, struct, argparse
sys.path.insert(0, "gen")
import hazard

NAME = "parallel_sum__sliding_block_cached__dense_activation_silu__decode"
def f2u(x): return struct.unpack("<I", struct.pack("<f", x))[0]
LOG2E = f2u(1.4426950408889634); SCALE = f2u(128 ** -0.5); EPS = f2u(1e-5)

OREC, AREC, BREC, QREC, HREC, MLREC, EPOCH = 0x0, 0x100000, 0x140000, 0x180000, 0x1A0000, 0x1F0000, 0x1F8000
SDELTA = 0x40000
STAMPS = 0x400000
L_RED, L_Q, L_ML, L_CO, L_CNT, L_O, L_B, L_A = 0, 2048, 3072, 3328, 3392, 4096, 12288, 14336
LDS_BYTES = 16384
SPIN_LIMIT = 0x40000

class G:
    def __init__(s, opt):
        s.o = opt; s.lines = []; s.vm = []; s.nst = 0; s.lab = 0; s.names = []; s.tail = []; s.allnames = []; s.maxst = 0
    def e(s, t):
        for ln in t.strip("\n").split("\n"):
            if not ln.strip(): continue
            s.lines.append("    " + ln.strip() if not ln.strip().endswith(":") else ln.strip())
    def c(s, t): s.lines.append("    ; " + t)
    def vmem(s, t, name):
        s.e(t); s.vm.append(name)
    def cnt(s, name):
        idx = max(k for k, n in enumerate(s.vm) if n == name)
        return len(s.vm) - 1 - idx
    def wait(s, name, extra=""):
        s.e(f"s_waitcnt vmcnt({s.cnt(name)}) {extra}".strip())
    def stamp(s, label=""):
        if not s.o.stamps: return
        k = s.nst; s.nst += 1; s.maxst = max(s.maxst, s.nst)
        s.e(f"s_memtime s[{sST+2*k}:{sST+2*k+1}]")
        s.names.append(label)
    def newrole(s, vm, nst):
        s.allnames.append(s.names); s.names = s.names[:nst]; s.nst = nst; s.vm = list(vm)
    def label(s, base):
        s.lab += 1; return f"L_{base}_{s.lab}"

def r(b, n=1): return f"v{b}" if n == 1 else f"v[{b}:{b+n-1}]"
def sr(b, n=1): return f"s{b}" if n == 1 else f"s[{b}:{b+n-1}]"

TID, VL, VL16, VTAG = 0, 1, 2, 3
T = 4
DUM, VTAGM, VW, VST = 20, 21, 22, 23
X8, XQ, XH = 24, 28, 30
HG = 24
WQ, W1 = 32, 48
AQ, AH = 56, 64
W2 = 72
WO = 80
WOP = 32
MLG, OG = 48, 64
vW2o, vWOo, vWOo2, vPub, vRedW, vOG, vMLG, vFin, vL8, vXres, vOut, vHG, vPT, vBp, vT8 = range(96, 111)
K, V = 24, 56
TV = K
QG = 88
S = 104
Q = 112
DA = 88
OUT = 56
vKo, vVo, vOW, vQrd, vOrd, vQG, vFr = range(120, 127)
NVGPR = 128
pX, pK, pV, pWQ, pWO, pW1, pW2, pOUT, pWS = 4, 6, 8, 10, 12, 16, 18, 20, 24
sG, sI, sW, sTAG, sLO, sHI = 26, 27, 28, 29, 30, 31
sM, sSC, sL2 = 32, 40, 42
sH = 44
sO = 32
sR, sSPIN, sXRES, sMLP = 22, 14, 15, 3
sXCC, sCO, pWS2, pWSX, sCNT = 48, 49, 50, 52, 54
sQM = 0
sST = 56

def dpp(g, v, ctrl, op="add"):
    g.e(f"v_{op}_f32_dpp v{v}, v{v}, v{v} {ctrl} bank_mask:0xf")
def wave_sum_to_sgpr(g, v, sd):
    for c in ("row_ror:8 row_mask:0xf", "row_ror:4 row_mask:0xf", "row_ror:2 row_mask:0xf", "row_ror:1 row_mask:0xf",
              "row_bcast:15 row_mask:0xa", "row_bcast:31 row_mask:0xc"):
        g.e("s_nop 1"); dpp(g, v, c)
    g.e(f"s_nop 0\nv_readlane_b32 s{sd}, v{v}, 63\ns_nop 1")
def bf16r(g, d, s_):
    g.e(f"v_cvt_pk_bf16_f32 v{d}, v{s_}, v{s_}\nv_lshlrev_b32 v{d}, 16, v{d}")
def xor_reduce(g, v, t, op, bits):
    for b in bits:
        sw = "v_permlane32_swap_b32" if b == 5 else "v_permlane16_swap_b32"
        g.e(f"v_mov_b32 v{t}, v{v}\ns_nop 1\n{sw} v{v}, v{t}\nv_{op}_f32 v{v}, v{v}, v{t}")

def check_retry(g, name, loads, tags, first_wait, mask=None):
    slow, ok = g.label(name + "s"), g.label(name + "k")
    g.e(first_wait)
    for t in tags: g.e(f"v_cmpx_eq_u32 vcc, v{VTAG}, v{t}")
    full = "-1" if mask is None else mask
    g.e(f"s_andn2_b64 s[{sR}:{sR+1}], {full}, exec\ns_cbranch_scc1 {slow}\n{ok}:")
    if mask is not None: g.e("s_mov_b64 exec, -1")
    t_ = [f"{slow}:\ns_sub_u32 s{sSPIN}, s{sSPIN}, 1\ns_cbranch_scc1 L_end\ns_mov_b64 exec, s[{sR}:{sR+1}]"] + loads + ["s_waitcnt vmcnt(0)"]
    t_ += [f"v_cmpx_eq_u32 vcc, v{VTAG}, v{t}" for t in tags]
    t_.append(f"s_andn2_b64 s[{sR}:{sR+1}], s[{sR}:{sR+1}], exec\ns_cbranch_scc1 {slow}\ns_mov_b64 exec, -1\ns_branch {ok}")
    g.tail += t_

def check_retry_fs(g, name, loads, tags, first_wait):
    slow, lp, ok = g.label(name + "s"), g.label(name + "l"), g.label(name + "k")
    g.e(first_wait)
    for t in tags: g.e(f"v_cmpx_eq_u32 vcc, v{VTAGM}, v{t}")
    g.e(f"s_andn2_b64 s[{sR}:{sR+1}], -1, exec\ns_cbranch_scc1 {slow}\n{ok}:")
    t_ = [f"{slow}:\ns_mov_b32 s{sCNT}, 0\n{lp}:",
          f"s_sub_u32 s{sSPIN}, s{sSPIN}, 1\ns_cbranch_scc1 L_end",
          f"s_add_u32 s{sCNT}, s{sCNT}, 1\ns_and_b32 s55, s{sCNT}, 3\ns_cmp_eq_u32 s55, 3",
          f"s_cselect_b32 s{pWSX}, s{pWS2}, s{pWS}\ns_cselect_b32 s{pWSX+1}, s{pWS2+1}, s{pWS+1}",
          f"s_mov_b64 exec, s[{sR}:{sR+1}]"]
    t_ += [l.replace(sr(pWS,2), sr(pWSX,2)) for l in loads]
    t_.append("s_waitcnt vmcnt(0)")
    for t in tags: t_.append(f"v_xor_b32 v{T}, v{VTAG}, v{t}\nv_cmpx_gt_u32 vcc, 16, v{T}")
    t_.append(f"s_mov_b64 s[46:47], exec")
    for t in tags: t_.append(f"v_cmpx_eq_u32 vcc, v{VTAGM}, v{t}")
    t_.append(f"s_cmp_eq_u64 s[46:47], exec\ns_cselect_b32 s{sCO}, s{sCO}, 0")
    t_.append(f"s_andn2_b64 s[{sR}:{sR+1}], s[{sR}:{sR+1}], s[46:47]\ns_cbranch_scc1 {lp}\ns_mov_b64 exec, -1\ns_branch {ok}")
    g.tail += t_

def fs_store(g, text, name):
    sl, bk = g.label("st"), g.label("stb")
    g.e(f"s_cmp_eq_u32 s{sCO}, 0\ns_cbranch_scc1 {sl}")
    g.vmem(text, name)
    g.e(f"{bk}:")
    g.tail.append(f"{sl}:\n{text} sc1\ns_branch {bk}")

def tagcalc(g):
    g.e(f"""
    s_mul_i32 s{sTAG}, s{sTAG}, 0x9E3779B1
    s_add_u32 s{sTAG}, s{sTAG}, 0x7F4A7C15
    s_xor_b32 s{sXCC}, s{sXCC}, s{sTAG}
    v_mov_b32 v{VTAG}, s{sTAG}
    v_mov_b32 v{VTAGM}, s{sXCC}
    """)

def sum4(g, addr, base, stride512):
    b = base // 512
    g.e(f"""
    ds_read2st64_b64 {r(T,4)}, v{addr} offset0:{b} offset1:{b+stride512}
    ds_read2st64_b64 {r(T+4,4)}, v{addr} offset0:{b+2*stride512} offset1:{b+3*stride512}
    s_waitcnt lgkmcnt(0)
    v_pk_add_f32 {r(T,2)}, {r(T,2)}, {r(T+2,2)}
    v_pk_add_f32 {r(T+4,2)}, {r(T+4,2)}, {r(T+6,2)}
    v_add_f32 v{T+12}, v{T}, v{T+4}
    v_add_f32 v{T+14}, v{T+1}, v{T+5}
    """)

def build(o):
    g = G(o); e = g.e
    NT = "nt"
    e(f"{NAME}_kernel:")
    e("s_cmp_ge_u32 s2, 256\ns_cbranch_scc1 L_end")
    e("s_load_dwordx16 s[4:19], s[0:1], 0\ns_load_dwordx2 s[20:21], s[0:1], 64\ns_load_dwordx2 s[24:25], s[0:1], 80")
    if o.stamps:
        e(f"s_memrealtime s[100:101]"); g.stamp("start")
    g.c("prefetch this kernel's code into L2")
    e(f"s_getpc_b64 s[{sR}:{sR+1}]\nv_lshlrev_b32 v{T}, 4, v0\nv_min_u32 v{T}, CODE_BYTES-64, v{T}\nv_lshrrev_b32 v{VW}, 6, v0")
    g.vmem(f"global_load_dword v{DUM}, v{T}, s[{sR}:{sR+1}]", "code")
    e(f"""
    v_readfirstlane_b32 s{sW}, v{VW}
    v_and_b32 v{VL}, 63, v0
    s_and_b32 s{sG}, s2, 7
    s_lshr_b32 s{sI}, s2, 3
    v_lshlrev_b32 v{VL16}, 4, v{VL}
    s_getreg_b32 s{sXCC}, hwreg(HW_REG_XCC_ID)
    s_mov_b32 s{sLO}, 0x05040100
    s_mov_b32 s{sHI}, 0x07060302
    s_mov_b32 s36, {EPOCH:#x}
    s_lshl_b32 s43, s{sG}, 14
    s_add_u32 s43, s43, {QREC:#x}
    s_and_b32 s{sXCC}, s{sXCC}, 15
    s_cmp_ge_u32 s{sW}, 4
    s_cbranch_scc1 L_main
    """)
    vm0, nst0 = list(g.vm), g.nst
    e(f"""
    s_min_u32 s32, s{sI}, 27
    s_mul_i32 s33, s{sG}, 28
    s_add_u32 s33, s33, s32            ; u
    s_lshr_b32 s34, s33, 2
    s_and_b32 s35, s33, 3
    s_lshr_b32 s39, s{sI}, 2
    s_and_b32 s40, s{sI}, 3
    v_lshrrev_b32 v{T+2}, 3, v0
    s_lshl_b32 s41, s40, 8
    v_lshl_add_u32 v{T+3}, v{T+2}, 3, s41
    v_lshrrev_b32 v{T+10}, 2, v0
    s_lshl_b32 s41, s35, 8
    v_lshl_add_u32 v{T+4}, v{T+10}, 2, s41
    s_lshl_b32 s41, s{sG}, 10
    s_lshl_b32 s42, s39, 7
    s_add_u32 s41, s41, s42
    s_lshl_b32 s42, s40, 20
    s_add_u32 s41, s41, s42
    v_and_b32 v{T+11}, 7, v0
    v_lshl_add_u32 v{T+5}, v{T+11}, 4, s41
    v_lshl_add_u32 v{T+5}, v{T+2}, 15, v{T+5}
    v_add_u32 v{T+6}, 0x2000, v{T+5}
    v_add_u32 v{T+7}, 0x4000, v{T+5}
    v_add_u32 v{T+8}, 0x6000, v{T+5}
    s_mul_i32 s41, s35, {128*3584}
    s_lshl_b32 s42, s34, 6
    s_add_u32 s41, s41, s42
    v_and_b32 v{T+12}, 3, v0
    v_lshlrev_b32 v{T+12}, 4, v{T+12}
    v_mul_u32_u24 v{T+9}, 7168, v{T+10}
    v_add3_u32 v{T+9}, v{T+9}, v{T+12}, s41    ; w1
    s_lshl_b32 s37, s{sG}, 5
    s_add_u32 s37, s37, s{sI}           ; c' = 32g+i
    s_lshl_b32 s38, s37, 2
    s_lshr_b32 s46, s39, 1
    s_lshl_b32 s46, s46, 12
    s_add_u32 s45, s43, s46
    s_lshl_b32 s46, s40, 10
    s_add_u32 s45, s45, s46
    s_and_b32 s46, s39, 1
    s_lshl_b32 s46, s46, 9
    s_add_u32 s45, s45, s46
    s_lshl_b32 s46, s33, 8
    s_add_u32 s46, s46, {HREC-512:#x}
    v_mov_b32 v{T+13}, s45
    v_mov_b32 v{T+15}, s46
    v_cmp_lt_u32 vcc, 31, v{VL}
    s_lshl_b32 s45, s{sW}, 3
    s_lshl_b32 s46, s{sW}, 2
    v_cndmask_b32 v{T+13}, v{T+13}, v{T+15}, vcc
    v_add_u32 v{vPub}, v{T+13}, v{VL16}
    s_waitcnt lgkmcnt(0)
    """)
    g.stamp("karg")
    g.vmem(f"global_load_dwordx4 {r(X8,4)}, v{VL16}, {sr(pX,2)}", "x")
    g.vmem(f"global_load_dwordx2 {r(XQ,2)}, v{T+3}, {sr(pX,2)}", "x")
    g.vmem(f"global_load_dword v{XH}, v{T+4}, {sr(pX,2)}", "x")
    e(f"s_lshl_b32 s{sQM}, 0xff, s45\ns_lshl_b32 s{sQM+1}, 0xf, s46")
    if o.s0: e("s_barrier")
    for u in range(4):
        g.vmem(f"global_load_dwordx4 {r(WQ+4*u,4)}, v{T+5+u}, {sr(pWQ,2)} {NT}", "wq")
    g.c("bring the q/h record lines into this die's L2 ahead of the stores")
    e(f"s_mov_b64 exec, s[{sQM}:{sQM+1}]")
    g.vmem(f"global_load_dword v{DUM}, v{vPub}, {sr(pWS,2)} {o.ptpol}", "pt")
    e("s_mov_b64 exec, -1")
    for u in range(2):
        g.vmem(f"global_load_dwordx4 {r(W1+4*u,4)}, v{T+9}, {sr(pW1,2)} offset:{3584*u} {NT}", "w1")
    if o.s1 == 0: e("s_barrier")
    e(f"s_load_dword s{sTAG}, {sr(pWS,2)}, s36\ns_load_dword s{sXRES}, {sr(pX,2)}, s38")
    e("s_branch L_aux2")
    cut1 = len(g.lines)
    e("L_aux2:")
    g.c("addresses used later")
    e(f"""
    s_mov_b32 s{sSPIN}, {SPIN_LIMIT:#x}
    s_add_u32 s{pWS2}, s{pWS}, {SDELTA:#x}
    s_addc_u32 s{pWS2+1}, s{pWS+1}, 0
    s_lshl_b32 s41, s34, 15
    s_lshl_b32 s42, s35, 8
    s_add_u32 s41, s41, s42
    s_add_u32 s41, s41, 4096
    v_lshlrev_b32 v{T+3}, 2, v{VL}
    v_lshl_add_u32 v{vW2o}, v{VW}, 13, v{T+3}
    v_add_u32 v{vW2o}, s41, v{vW2o}
    s_lshl_b32 s44, s{sG}, 3
    s_add_u32 s44, s44, s39             ; p = 8g+a
    s_lshl_b32 s45, s44, 16
    s_lshl_b32 s46, s40, 8
    s_add_u32 s45, s45, s46
    s_add_u32 s45, s45, 4096
    v_lshl_add_u32 v{vWOo}, v{VW}, 14, v{T+3}
    v_add_u32 v{vWOo}, s45, v{vWOo}
    v_add_u32 v{vWOo2}, 0x2000, v{vWOo}
    s_lshl_b32 s45, s40, 16
    s_lshl_b32 s46, s44, 10
    s_add_u32 s45, s45, s46
    s_add_u32 s45, s45, {AREC:#x}
    s_lshl_b32 s46, s35, 16
    s_lshl_b32 s47, s34, 10
    s_add_u32 s46, s46, s47
    s_add_u32 s46, s46, {BREC:#x}
    s_cmp_lt_u32 s{sW}, 2
    s_cselect_b32 s45, s45, s46
    v_add_u32 v{vBp}, s45, v{VL16}
    v_and_b32 v{T+4}, 127, v0
    v_lshl_add_u32 v{vPT}, v{T+4}, 3, s45
    s_lshr_b32 s45, s{sG}, 1
    s_lshl_b32 s45, s45, 16
    s_and_b32 s46, s37, 63
    s_lshl_b32 s46, s46, 4
    s_add_u32 s45, s45, s46
    s_add_u32 s45, s45, {AREC:#x}
    v_lshl_add_u32 v{vFin}, v{VL}, 10, s45
    s_add_u32 s45, s45, {BREC-AREC:#x}
    v_min_u32 v{T+4}, 55, v{VL}
    v_lshl_add_u32 v{T+4}, v{T+4}, 10, s45
    s_cmp_eq_u32 s{sW}, 1
    s_cselect_b64 vcc, -1, 0
    v_cndmask_b32 v{vBp}, v{vBp}, v{T+4}, vcc
    v_lshrrev_b32 v{vOut}, 5, v{VL}
    v_lshl_add_u32 v{vOut}, v{vOut}, 1, s38
    s_add_u32 s47, s47, {HREC:#x}
    v_lshl_add_u32 v{vHG}, v{VW}, 6, s47
    v_lshl_add_u32 v{vHG}, v{T+11}, 3, v{vHG}
    v_bfe_u32 v{T+4}, v0, 3, 2
    v_lshl_add_u32 v{vHG}, v{T+4}, 8, v{vHG}
    v_lshlrev_b32 v{vRedW}, 5, v{T+11}
    v_bfe_u32 v{T+4}, v0, 4, 1
    v_lshl_add_u32 v{vRedW}, v{T+4}, 3, v{vRedW}
    v_bfe_u32 v{T+4}, v0, 5, 1
    v_lshl_add_u32 v{vRedW}, v{T+4}, 2, v{vRedW}
    v_lshl_add_u32 v{vRedW}, v{VW}, 9, v{vRedW}
    s_lshl_b32 s46, s44, 14
    v_lshl_add_u32 v{vOG}, v{VW}, 12, s46
    v_add_u32 v{vOG}, v{VL16}, v{vOG}
    s_lshr_b32 s46, s44, 1
    s_lshl_b32 s46, s46, 9
    s_add_u32 s46, s46, {MLREC:#x}
    v_lshrrev_b32 v{T+4}, 3, v{VL}
    v_lshl_add_u32 v{vMLG}, v{T+4}, 4, s46
    v_lshlrev_b32 v{vL8}, 3, v{VL}
    v_lshlrev_b32 v{vT8}, 3, v0
    s_mov_b32 s{sL2}, {LOG2E:#x}
    """)
    g.c("layernorm statistics")
    g.wait("x")
    if o.s1 == 1: e("s_barrier")
    U = T
    for d in range(4):
        e(f"v_lshlrev_b32 v{U+2*d}, 16, v{X8+d}\nv_and_b32 v{U+2*d+1}, 0xffff0000, v{X8+d}")
    e(f"""
    v_pk_add_f32 {r(T+8,2)}, {r(U,2)}, {r(U+2,2)}
    v_pk_add_f32 {r(T+10,2)}, {r(U+4,2)}, {r(U+6,2)}
    v_pk_add_f32 {r(T+8,2)}, {r(T+8,2)}, {r(T+10,2)}
    v_add_f32 v{T+8}, v{T+8}, v{T+9}
    """)
    wave_sum_to_sgpr(g, T+8, 44)
    e(f"v_mov_b32 v{T+12}, 0x3b000000\nv_mul_f32 v{T+10}, s44, v{T+12}")
    for d in range(4):
        e(f"v_pk_add_f32 {r(U+2*d,2)}, {r(U+2*d,2)}, {r(T+10,2)} op_sel_hi:[1,0] neg_lo:[0,1] neg_hi:[0,1]")
    e(f"v_pk_mul_f32 {r(T+8,2)}, {r(U,2)}, {r(U,2)}")
    for d in range(1, 4):
        e(f"v_pk_fma_f32 {r(T+8,2)}, {r(U+2*d,2)}, {r(U+2*d,2)}, {r(T+8,2)}")
    e(f"v_add_f32 v{T+8}, v{T+8}, v{T+9}")
    wave_sum_to_sgpr(g, T+8, 44)
    e(f"v_mul_f32 v{T+11}, s44, v{T+12}")
    bf16r(g, T+10, T+10)
    bf16r(g, T+11, T+11)
    e(f"v_add_f32 v{T+11}, {EPS:#x}, v{T+11}")
    bf16r(g, T+11, T+11)
    e(f"v_sqrt_f32 v{T+11}, v{T+11}\ns_nop 0")
    bf16r(g, T+11, T+11)
    e(f"v_rcp_f32 v{T+12}, v{T+11}")
    for k, x in enumerate((XQ, XQ+1, XH)):
        a = U + 2*k
        e(f"""
        v_lshlrev_b32 v{a}, 16, v{x}
        v_and_b32 v{a+1}, 0xffff0000, v{x}
        v_pk_add_f32 {r(a,2)}, {r(a,2)}, {r(T+10,2)} op_sel_hi:[1,0] neg_lo:[0,1] neg_hi:[0,1]
        v_cvt_pk_bf16_f32 v{x}, v{a}, v{a+1}
        v_lshlrev_b32 v{a}, 16, v{x}
        v_and_b32 v{a+1}, 0xffff0000, v{x}
        v_pk_mul_f32 {r(a,2)}, {r(a,2)}, {r(T+12,2)} op_sel_hi:[1,0]
        v_cvt_pk_bf16_f32 v{x}, v{a}, v{a+1}
        """)
    g.stamp("ln")
    e("s_waitcnt lgkmcnt(0)")
    tagcalc(g)
    e(f"""
    v_mov_b32 v{T+13}, s{sXCC}
    v_mov_b32 v{T+15}, s{sXCC}
    v_cmp_gt_u32 vcc, 32, v{VL}
    s_lshl_b32 s45, s{sXRES}, 16
    s_and_b32 s46, s{sXRES}, 0xffff0000
    v_mov_b32 v{T}, s45
    v_mov_b32 v{T+1}, s46
    v_cndmask_b32 v{vXres}, v{T+1}, v{T}, vcc
    v_mov_b32 v{T+8}, 0
    v_mov_b32 v{T+9}, 1
    """)
    def last_publishes(A, rors, mask, off, cnt, lo, hi, name):
        for k in range(0, 8, 2): e(f"v_permlane32_swap_b32 v{A+k}, v{A+k+1}")
        for k in range(0, 8, 2): e(f"v_add_f32 v{A+k}, v{A+k}, v{A+k+1}")
        e(f"v_permlane16_swap_b32 v{A}, v{A+2}\ns_nop 0\nv_permlane16_swap_b32 v{A+4}, v{A+6}")
        e(f"v_add_f32 v{A}, v{A}, v{A+2}\nv_add_f32 v{A+4}, v{A+4}, v{A+6}")
        for c in rors:
            e("s_nop 0")
            for v in (A, A+4): dpp(g, v, f"row_ror:{c} row_mask:0xf")
        skip = g.label("np")
        e(f"""
        s_mov_b32 exec_lo, {mask:#x}
        s_mov_b32 exec_hi, {mask:#x}
        ds_write2_b32 v{vRedW}, v{A}, v{A+4} offset0:{off} offset1:{off+4}
        s_mov_b64 exec, 1
        ds_add_rtn_u32 v{T+10}, v{T+8}, v{T+9} offset:{cnt}
        s_waitcnt lgkmcnt(0)
        v_readfirstlane_b32 s45, v{T+10}
        s_mov_b32 exec_lo, {lo:#x}
        s_mov_b32 exec_hi, {hi:#x}
        s_cmp_lg_u32 s45, 3
        s_cbranch_scc1 {skip}
        """)
        sum4(g, vL8, L_RED, 1)
        e(f"""
        global_store_dwordx4 v{vPub}, {r(T+12,4)}, {sr(pWS,2)}
        global_store_dwordx4 v{vPub}, {r(T+12,4)}, {sr(pWS2,2)} sc1
        """)
        g.stamp(name)
        if name == "qpub":
            e(f"s_waitcnt vmcnt(2)\ns_branch L_w1ok\n{skip}:\ns_waitcnt vmcnt(0)\nL_w1ok:\ns_mov_b64 exec, -1")
        else:
            e(f"{skip}:\ns_mov_b64 exec, -1")
    g.c("q partial slice")
    g.wait("wq")
    if o.s3: e("s_barrier")
    g.stamp("wq")
    for half in range(2):
        for d in range(4):
            a, b = WQ + 8*half + d, WQ + 8*half + 4 + d
            e(f"v_perm_b32 v{T+2*d}, v{b}, v{a}, s{sLO}\nv_perm_b32 v{T+2*d+1}, v{b}, v{a}, s{sHI}")
        for k in range(8):
            e(f"v_dot2_f32_bf16 v{AQ+k}, v{T+k}, v{XQ+half}, {'0' if half == 0 else 'v%d' % (AQ+k)}")
    last_publishes(AQ, (8,), 0x00ff00ff, 0, L_CNT, 0xffffffff, 0, "qpub")
    g.c("h partial slice")
    g.stamp("w1")
    for d in range(4):
        a, b = W1 + d, W1 + 4 + d
        e(f"v_perm_b32 v{T+2*d}, v{b}, v{a}, s{sLO}\nv_perm_b32 v{T+2*d+1}, v{b}, v{a}, s{sHI}")
    for k in range(8):
        e(f"v_dot2_f32_bf16 v{AH+k}, v{T+k}, v{XH}, 0")
    last_publishes(AH, (8, 4), 0x000f000f, 64, L_CNT+4, 0, 0xffff, "hpub")
    e(f"""
    s_cmp_eq_u32 s{sW}, 0
    s_cselect_b32 s45, {L_A-L_B}, 0
    v_add_u32 v{vRedW}, s45, v{vL8}
    v_mov_b32 v{T+13}, s{sTAG}
    v_mov_b32 v{T+15}, s{sTAG}
    """)
    for tok in o.prog.split(","):
        if tok == "b": e("s_barrier")
    e("s_barrier")
    g.stamp("B2")
    h_loads = [f"global_load_dwordx2 {r(HG,2)}, v{vHG}, {sr(pWS,2)} sc1"]
    g.vmem(h_loads[0], "hg")
    for n in range(8):
        g.vmem(f"global_load_dword v{W2+n}, v{vW2o}, {sr(pW2,2)} offset:{n*1024-4096} {NT}", "w2")
    def woload(a, b):
        for n in range(a, b):
            g.vmem(f"global_load_dword v{WO+n}, v{vWOo if n < 8 else vWOo2}, {sr(pWO,2)} offset:{(n & 7)*1024-4096} {NT}", f"wo{n}")
    if o.ptab:
        g.vmem(f"global_load_dword v{DUM}, v{vPT}, {sr(pWS,2)}", "pt")
    if o.tlbout:
        g.vmem(f"global_load_ushort v{DUM}, v{vOut}, {sr(pOUT,2)}", "pt")
    woload(0, o.woa)
    e("s_barrier")
    e("s_barrier")
    g.stamp("B3b")
    ml_loads = [f"global_load_dwordx4 {r(MLG+4*u,4)}, v{vMLG}, {sr(pWS,2)} offset:{128*u} sc1" for u in range(4)]
    o_loads = [f"global_load_dwordx4 {r(OG+4*u,4)}, v{vOG}, {sr(pWS,2)} offset:{1024*u} sc1" for u in range(4)]
    for ld in ml_loads: g.vmem(ld, "ml")
    woload(o.woa, 16)
    e("s_barrier")
    g.stamp("B4")
    g.c("h = silu(sum of 4 partials), second FFN GEMV")
    check_retry_fs(g, "h", h_loads, [HG+1], f"s_waitcnt vmcnt({g.cnt('hg')})")
    e("s_nop 2")
    dpp(g, HG, "row_ror:8 row_mask:0xf")
    xor_reduce(g, HG, T, "add", (4,))
    bf16r(g, HG, HG)
    e(f"""
    v_mul_f32 v{T}, {LOG2E | 0x80000000:#x}, v{HG}
    v_exp_f32 v{T}, v{T}
    s_nop 0
    v_add_f32 v{T}, 1.0, v{T}
    v_rcp_f32 v{T}, v{T}
    s_nop 0
    v_mul_f32 v{HG}, v{HG}, v{T}
    s_nop 1
    v_mov_b32_dpp v{T}, v{HG} quad_perm:[1,0,3,2] row_mask:0xf bank_mask:0xf
    v_cvt_pk_bf16_f32 v{HG}, v{HG}, v{T}
    s_nop 0
    """)
    for n in range(4): e(f"v_readlane_b32 s{sH+n}, v{HG}, {2*n}")
    g.wait("w2")
    for n in range(4):
        e(f"v_perm_b32 v{T+2+2*n}, v{W2+2*n+1}, v{W2+2*n}, s{sLO}\nv_perm_b32 v{T+2+2*n+1}, v{W2+2*n+1}, v{W2+2*n}, s{sHI}")
    for n in range(4):
        for c in range(2):
            e(f"v_dot2_f32_bf16 v{T+10+c}, v{T+2+2*n+c}, s{sH+n}, {'0' if n == 0 else 'v%d' % (T+10+c)}")
    e(f"""
    s_nop 2
    ds_write_b64 v{vT8}, {r(T+10,2)} offset:{L_B}
    """)
    g.stamp("ffn")
    def woperm(a, b):
        for n in range(a, b):
            e(f"v_perm_b32 v{WOP+2*n}, v{WO+2*n+1}, v{WO+2*n}, s{sLO}\nv_perm_b32 v{WOP+2*n+1}, v{WO+2*n+1}, v{WO+2*n}, s{sHI}")
    def oissue():
        for ld in o_loads: g.vmem(ld, "o")
    if o.opos == 0: oissue()
    g.c("softmax weights of the 32 splits")
    check_retry(g, "ml", ml_loads, [MLG+4*u+k for u in range(4) for k in (1, 3)], f"s_waitcnt vmcnt({g.cnt('ml')})")
    g.stamp("ml")
    if o.opos == 1: oissue()
    M_, L_ = T, T+1
    e(f"""
    v_max3_f32 v{M_}, v{MLG}, v{MLG+4}, v{MLG+8}
    v_max_f32 v{M_}, v{M_}, v{MLG+12}
    s_nop 2
    v_max_f32_dpp v{M_}, v{M_}, v{M_} row_ror:8 row_mask:0xf bank_mask:0xf
    """)
    xor_reduce(g, M_, T+2, "max", (5, 4))
    for u in range(4): e(f"v_sub_f32 v{MLG+4*u}, v{MLG+4*u}, v{M_}")
    for u in range(4): e(f"v_mul_f32 v{MLG+4*u}, s{sL2}, v{MLG+4*u}")
    for u in range(4): e(f"v_exp_f32 v{MLG+4*u}, v{MLG+4*u}")
    e(f"v_mul_f32 v{L_}, v{MLG}, v{MLG+2}")
    for u in range(1, 4): e(f"v_fmac_f32 v{L_}, v{MLG+4*u}, v{MLG+4*u+2}")
    e(f"s_nop 1\nv_add_f32_dpp v{L_}, v{L_}, v{L_} row_ror:8 row_mask:0xf bank_mask:0xf")
    xor_reduce(g, L_, T+2, "add", (5, 4))
    e(f"v_rcp_f32 v{L_}, v{L_}")
    woperm(0, o.woa // 2)
    if o.woa < 2: e("s_nop 0")
    for u in range(4): e(f"v_mul_f32 v{MLG+4*u}, v{MLG+4*u}, v{L_}")
    g.stamp("wgt")
    if o.opos == 2: oissue()
    g.wait("wo15")
    g.stamp("wo")
    if o.opos == 3: oissue()
    woperm(o.woa // 2, 8)
    check_retry(g, "o", o_loads, [OG+4*u+k for u in range(4) for k in (1, 3)], "s_waitcnt vmcnt(0)")
    g.stamp("ogot")
    a0, a1 = T, T+1
    e(f"v_mul_f32 v{a0}, v{MLG}, v{OG}\nv_mul_f32 v{a1}, v{MLG}, v{OG+2}")
    for u in range(1, 4): e(f"v_fmac_f32 v{a0}, v{MLG+4*u}, v{OG+4*u}\nv_fmac_f32 v{a1}, v{MLG+4*u}, v{OG+4*u+2}")
    e(f"""
    s_nop 1
    v_permlane32_swap_b32 v{a0}, v{a1}
    v_add_f32 v{a0}, v{a0}, v{a1}
    s_nop 1
    v_add_f32_dpp v{a0}, v{a0}, v{a0} row_ror:8 row_mask:0xf bank_mask:0xf
    v_mov_b32 v{a1}, v{a0}
    s_nop 1
    v_permlane16_swap_b32 v{a0}, v{a1}
    v_add_f32 v{a0}, v{a0}, v{a1}
    v_mov_b32 v{a1}, v{a0}
    s_nop 1
    v_permlane32_swap_b32 v{a0}, v{a1}
    v_cvt_pk_bf16_f32 v{a0}, v{a0}, v{a1}
    s_nop 0
    """)
    for n in range(8): e(f"v_readlane_b32 s{sO+n}, v{a0}, {n}")
    for n in range(8):
        for c in range(2):
            e(f"v_dot2_f32_bf16 v{T+8+c}, v{WOP+2*n+c}, s{sO+n}, {'0' if n == 0 else 'v%d' % (T+8+c)}")
    e(f"""
    s_bitcmp1_b32 s{sW}, 0
    s_nop 1
    ds_write_b64 v{vT8}, {r(T+8,2)} offset:{L_A}
    s_waitcnt lgkmcnt(0)
    s_barrier
    s_cbranch_scc1 L_final
    """)
    sum4(g, vRedW, L_B, 1)
    e(f"global_store_dwordx4 v{vBp}, {r(T+12,4)}, {sr(pWS,2)} sc1")
    g.stamp("apub")
    e(f"s_branch L_out\nL_final:\ns_cmp_lg_u32 s{sW}, 1\ns_cbranch_scc1 L_out")
    def final_reduce(dst, src):
        e(f"""
        s_nop 1
        v_permlane32_swap_b32 v{src}, v{src+2}
        v_add_f32 v{dst}, v{src}, v{src+2}
        v_mov_b32 v{src+2}, v{dst}
        s_nop 1
        v_permlane16_swap_b32 v{dst}, v{src+2}
        v_add_f32 v{dst}, v{dst}, v{src+2}
        """)
        for c in (8, 4, 2, 1):
            e("s_nop 1"); dpp(g, dst, f"row_ror:{c} row_mask:0xf")
    ab_loads = [f"global_load_dwordx4 {r(T+8,4)}, v{vFin}, {sr(pWS,2)} sc1", f"global_load_dwordx4 {r(T+4,4)}, v{vBp}, {sr(pWS,2)} sc1"]
    if o.gate: e(f"s_sleep {o.gate}")
    for ld in ab_loads: e(ld)
    e(f"s_mov_b32 s{sQM}, -1\ns_mov_b32 s{sQM+1}, 0xffffff")
    check_retry(g, "a", ab_loads, [T+9, T+11, T+5, T+7], "s_waitcnt vmcnt(0)")
    g.stamp("agot")
    e(f"""
    v_cndmask_b32 v{T+4}, 0, v{T+4}, s[{sQM}:{sQM+1}]
    v_cndmask_b32 v{T+6}, 0, v{T+6}, s[{sQM}:{sQM+1}]
    v_permlane32_swap_b32 v{T+8}, v{T+10}
    s_nop 0
    v_permlane32_swap_b32 v{T+4}, v{T+6}
    v_add_f32 v{T+1}, v{T+8}, v{T+10}
    v_add_f32 v{T}, v{T+4}, v{T+6}
    s_nop 1
    v_permlane16_swap_b32 v{T+1}, v{T}
    v_add_f32 v{T+1}, v{T+1}, v{T}
    """)
    for c in (8, 4, 2, 1):
        e("s_nop 1"); dpp(g, T+1, f"row_ror:{c} row_mask:0xf")
    g.c("rows 0/2 hold A of the two columns, rows 1/3 hold B")
    bf16r(g, T+1, T+1)
    e(f"v_mov_b32 v{T}, v{T+1}\ns_nop 1\nv_permlane16_swap_b32 v{T+1}, v{T}")
    e(f"v_add_f32 v{T+1}, v{vXres}, v{T+1}")
    bf16r(g, T+1, T+1)
    e(f"""
    v_add_f32 v{T+1}, v{T+1}, v{T}
    v_cvt_pk_bf16_f32 v{T+1}, v{T+1}, v{T+1}
    s_mov_b32 exec_lo, 1
    s_mov_b32 exec_hi, 1
    global_store_short v{vOut}, v{T+1}, {sr(pOUT,2)} {o.outpol}
    s_cmp_lg_u32 s2, 0
    s_cbranch_scc1 L_out
    v_mov_b32 v{T+2}, {EPOCH:#x}
    global_store_dword v{T+2}, v{VTAG}, {sr(pWS,2)} sc1
    """)
    e("s_branch L_out" if o.stamps else "s_endpgm")
    g.newrole(vm0, nst0)
    cut2 = len(g.lines)
    e("L_main:")
    e(f"""
    v_and_b32 v0, 255, v0
    v_and_b32 v{VW}, 3, v{VW}
    s_and_b32 s{sW}, s{sW}, 3
    s_lshl_b32 s41, s{sG}, 24
    s_lshl_b32 s42, s{sI}, 15
    s_add_u32 s41, s41, s42
    s_add_u32 s41, s41, 0xF00000
    v_lshl_add_u32 v{vVo}, v{VW}, {13 if o.lay == 'A' else 10}, s41
    v_and_b32 v{T+12}, 3, v0
    v_lshlrev_b32 v{T+12}, 4, v{T+12}
    v_bfe_u32 v{T+13}, v0, 2, 2
    v_lshl_add_u32 v{vQrd}, v{T+13}, 8, v{T+12}
    v_bfe_u32 v{T+13}, v0, 4, 2
    v_lshl_add_u32 v{vQrd}, v{T+13}, 6, v{vQrd}
    v_add_u32 v{vKo}, v{vQrd}, v{vVo}
    v_add_u32 v{vVo}, v{VL16}, v{vVo}
    v_lshl_add_u32 v{vQG}, v{VW}, 12, s43
    v_add_u32 v{vQG}, v{VL16}, v{vQG}
    s_lshl_b32 s45, s{sG}, 17
    s_lshl_b32 s46, s{sI}, 7
    s_add_u32 s46, s46, s45
    v_lshrrev_b32 v{T+2}, 3, v0
    v_and_b32 v{T+11}, 7, v0
    v_lshl_add_u32 v{vOW}, v{T+2}, 12, s46
    v_lshl_add_u32 v{vOW}, v{T+11}, 4, v{vOW}
    v_lshrrev_b32 v{T+10}, 2, v0
    v_lshlrev_b32 v{vOrd}, 4, v{T+10}
    v_bfe_u32 v{T+4}, v0, 1, 1
    v_lshl_add_u32 v{vOrd}, v{T+4}, 10, v{vOrd}
    v_and_b32 v{T+4}, 1, v0
    v_lshl_add_u32 v{vOrd}, v{T+4}, 3, v{vOrd}
    s_lshl_b32 s45, s{sG}, 2
    s_add_u32 s45, s45, s{sW}
    s_lshl_b32 s45, s45, 5
    s_add_u32 s45, s45, s{sI}
    s_lshl_b32 s45, s45, 4
    s_add_u32 s{sMLP}, s45, {MLREC:#x}
    s_mov_b32 s{sCO}, 1
    v_mov_b32 v{T+6}, 0
    v_mov_b32 v{T+7}, 0
    ds_write_b64 v{T+7}, {r(T+6,2)} offset:{L_CNT}
    s_mov_b32 s47, s36
    s_mul_i32 s46, s{sG}, {o.rg}
    s_mul_i32 s45, s{sI}, {o.ri}
    s_add_u32 s46, s46, s45
    """)
    g.c("each workgroup walks its 8 load slots in a rotated order (spreads the memory channels)")
    for n in range(8):
        e(f"s_add_u32 s{sM+n}, s46, {n}\ns_and_b32 s{sM+n}, s{sM+n}, 7\ns_lshl_b32 s{sM+n}, s{sM+n}, {10 if o.lay == 'A' else 12}")
    e(f"""
    s_waitcnt lgkmcnt(0)
    s_load_dword s{sTAG}, {sr(pWS,2)}, s47
    """)
    if o.s0: e("s_barrier")
    e("s_barrier")
    def kload(n):
        e(f"v_add_u32 v{T+n%2}, s{sM+n}, v{vKo}")
        g.vmem(f"global_load_dwordx4 {r(K+4*n,4)}, v{T+n%2}, {sr(pK,2)} {NT}", f"k{n}")
        if o.gap > 1: e(f"s_nop {o.gap-2}")
    def vload(n):
        e(f"v_add_u32 v{T+n%2}, s{sM+n}, v{vVo}")
        g.vmem(f"global_load_dwordx4 {r(V+4*n,4)}, v{T+n%2}, {sr(pV,2)} {NT}", f"v{n}")
        if o.gap > 1: e(f"s_nop {o.gap-2}")
    for n in range(o.k1): kload(n)
    e(f"""
    s_mov_b32 s{sSPIN}, {SPIN_LIMIT:#x}
    s_add_u32 s{pWS2}, s{pWS}, {SDELTA:#x}
    s_addc_u32 s{pWS2+1}, s{pWS+1}, 0
    """)
    e(f"s_mov_b32 s{sSC}, {SCALE:#x}\ns_mov_b32 s{sSC+1}, {SCALE:#x}\ns_mov_b32 s{sL2}, {LOG2E:#x}\ns_mov_b32 s{sL2+1}, {LOG2E:#x}")
    e(f"""
    v_lshlrev_b32 v{T+4}, 2, v0
    s_lshl_b32 s45, s{sW}, 2
    v_mov_b32 v{T+6}, s45
    v_mov_b32 v{T+7}, 0
    v_bfe_u32 v{T+14}, v0, 2, 2
    v_lshlrev_b32 v{T+14}, 5, v{T+14}
    v_lshl_add_u32 v{T+15}, v{VW}, 3, v{T+14}
    v_bfe_u32 v{T+14}, v0, 4, 2
    v_lshlrev_b32 v{T+14}, 5, v{T+14}
    v_lshl_add_u32 v{vFr}, v{VW}, 3, v{T+14}
    s_lshl_b32 s44, s{sW}, 4
    v_mov_b32 v{T+8}, s{sMLP}
    s_waitcnt lgkmcnt(0)
    """)
    tagcalc(g)
    if o.s3: e("s_barrier")
    g.stamp("S3")
    q_loads = [f"global_load_dwordx4 {r(QG+4*u,4)}, v{vQG}, {sr(pWS,2)} offset:{1024*u} sc1" for u in range(4)]
    nk, nv, v1 = o.k1, 0, None
    for tok in o.prog.split(","):
        if tok[0] == "w": g.wait(tok[1:])
        elif tok == "k": kload(nk); nk += 1
        elif tok == "v": vload(nv); nv += 1
        elif tok == "b": e("s_barrier")
        elif tok == "p":
            g.c("bring the lines this workgroup will write later into this die's L2")
            g.vmem(f"global_load_dword v{DUM}, v{vOW}, {sr(pWS,2)} {o.ptpol}", "pt")
            g.vmem(f"global_load_dword v{DUM}, v{T+8}, {sr(pWS,2)} {o.ptpol}", "pt")
        elif tok == "q":
            assert nk == 8
            g.stamp("qwait")
            for ld in q_loads: g.vmem(ld, "qg")
            v1 = nv
    assert nk == 8 and nv == 8
    o.v1 = v1
    g.stamp("viss")
    check_retry_fs(g, "q", q_loads, [QG+4*u+k for u in range(4) for k in (1, 3)], f"s_waitcnt vmcnt({g.cnt('qg')})")
    g.stamp("qgot")
    e(f"""
    v_add_f32 v{T}, v{QG}, v{QG+4}
    v_add_f32 v{T+1}, v{QG+2}, v{QG+6}
    v_add_f32 v{T+2}, v{QG+8}, v{QG+12}
    v_add_f32 v{T+3}, v{QG+10}, v{QG+14}
    v_mov_b32 v{T+5}, s{sCO}
    v_pk_add_f32 {r(T,2)}, {r(T,2)}, {r(T+2,2)}
    v_cvt_pk_bf16_f32 v{T}, v{T}, v{T+1}
    ds_write_b32 v{T+4}, v{T} offset:{L_Q}
    ds_write_b32 v{T+6}, v{T+5} offset:{L_CO}
    s_waitcnt lgkmcnt(0)
    s_barrier
    ds_read_b128 {r(Q,4)}, v{vQrd} offset:{L_Q}
    ds_read_b128 {r(T+8,4)}, v{T+7} offset:{L_CO}
    s_waitcnt lgkmcnt(1)
    """)
    if o.stamps: e("s_waitcnt lgkmcnt(0)")
    for n in range(8): e(f"v_mfma_f32_16x16x32_bf16 {r(K+4*n,4)}, {r(K+4*n,4)}, {r(Q,4)}, 0")
    e("s_waitcnt lgkmcnt(0)")
    for c in range(4):
        for n in range(8):
            if c == 0: e(f"v_mov_b32_dpp v{S+n}, v{K+4*n} quad_perm:[0,0,0,0] row_mask:0xf bank_mask:0xf")
            else: e(f"v_add_f32_dpp v{S+n}, v{K+4*n+c}, v{S+n} quad_perm:[{c},{c},{c},{c}] row_mask:0xf bank_mask:0xf")
    g.stamp("qk")
    for n in range(4): e(f"v_cvt_pk_bf16_f32 v{T+n}, v{S+2*n}, v{S+2*n+1}")
    for n in range(4): e(f"v_lshlrev_b32 v{S+2*n}, 16, v{T+n}\nv_and_b32 v{S+2*n+1}, 0xffff0000, v{T+n}")
    for n in range(4): e(f"v_pk_mul_f32 {r(S+2*n,2)}, {r(S+2*n,2)}, {sr(sSC,2)}")
    for n in range(4): e(f"v_cvt_pk_bf16_f32 v{T+n}, v{S+2*n}, v{S+2*n+1}")
    for n in range(4): e(f"v_lshlrev_b32 v{S+2*n}, 16, v{T+n}\nv_and_b32 v{S+2*n+1}, 0xffff0000, v{T+n}")
    m, l = T+2, T+3
    e(f"""
    v_max3_f32 v{m}, v{S}, v{S+1}, v{S+2}
    v_max3_f32 v{T}, v{S+3}, v{S+4}, v{S+5}
    v_max3_f32 v{m}, v{m}, v{S+6}, v{S+7}
    v_max_f32 v{m}, v{m}, v{T}
    v_mov_b32 v{T}, v{m}
    v_and_b32 v{T+8}, v{T+8}, v{T+9}
    v_and_b32 v{T+10}, v{T+10}, v{T+11}
    v_permlane32_swap_b32 v{m}, v{T}
    v_max_f32 v{m}, v{m}, v{T}
    v_mov_b32 v{T}, v{m}
    v_and_b32 v{T+8}, v{T+8}, v{T+10}
    s_nop 0
    v_permlane16_swap_b32 v{m}, v{T}
    v_max_f32 v{m}, v{m}, v{T}
    v_readfirstlane_b32 s{sCO}, v{T+8}
    """)
    for n in range(4):
        a = S + 2*n
        e(f"v_pk_add_f32 {r(a,2)}, {r(a,2)}, {r(m,2)} op_sel_hi:[1,0] neg_lo:[0,1] neg_hi:[0,1]")
    for n in range(4):
        a = S + 2*n
        e(f"v_pk_mul_f32 {r(a,2)}, {r(a,2)}, {sr(sL2,2)}")
    for k in range(8): e(f"v_exp_f32 v{S+k}, v{S+k}")
    P4 = T + 8
    e(f"""
    v_pk_add_f32 {r(T,2)}, {r(S,2)}, {r(S+2,2)}
    v_pk_add_f32 {r(T+4,2)}, {r(S+4,2)}, {r(S+6,2)}
    v_cvt_pk_bf16_f32 v{P4}, v{S}, v{S+1}
    v_pk_add_f32 {r(T,2)}, {r(T,2)}, {r(T+4,2)}
    v_add_f32 v{l}, v{T}, v{T+1}
    v_mov_b32 v{T}, v{l}
    v_cvt_pk_bf16_f32 v{P4+1}, v{S+2}, v{S+3}
    v_cvt_pk_bf16_f32 v{P4+2}, v{S+4}, v{S+5}
    v_permlane32_swap_b32 v{l}, v{T}
    v_add_f32 v{l}, v{l}, v{T}
    v_mov_b32 v{T}, v{l}
    v_cvt_pk_bf16_f32 v{P4+3}, v{S+6}, v{S+7}
    s_nop 0
    v_permlane16_swap_b32 v{l}, v{T}
    v_add_f32 v{l}, v{l}, v{T}
    s_mov_b64 exec, 0x1111
    ds_write_b64 v{T+15}, {r(m,2)} offset:{L_ML}
    s_mov_b64 exec, -1
    """)
    g.stamp("p")
    def vperm(n, ee):
        d = ee >> 1
        e(f"v_perm_b32 v{TV+4*ee+n}, v{V+4*(2*n+1)+d}, v{V+4*(2*n)+d}, s{sHI if ee & 1 else sLO}")
    npre = min(o.v1 // 2, 2)
    if npre > 0:
        for ee in range(8): vperm(0, ee)
    e(f"""
    s_waitcnt lgkmcnt(0)
    s_barrier
    ds_read_b128 {r(T,4)}, v{T+14} offset:{L_ML}
    ds_read_b128 {r(T+4,4)}, v{T+14} offset:{L_ML+16}
    ds_read_b32 v{vFr}, v{vFr} offset:{L_ML}
    """)
    if npre > 1:
        for ee in range(8): vperm(1, ee)
    g.c("workgroup max / sum per head (lane group = head); own rescale factor")
    e(f"""
    s_waitcnt lgkmcnt(0)
    v_max3_f32 v{T+12}, v{T}, v{T+2}, v{T+4}
    v_max_f32 v{T+12}, v{T+12}, v{T+6}
    v_sub_f32 v{vFr}, v{vFr}, v{T+12}
    v_sub_f32 v{T}, v{T}, v{T+12}
    v_sub_f32 v{T+2}, v{T+2}, v{T+12}
    v_sub_f32 v{T+4}, v{T+4}, v{T+12}
    v_sub_f32 v{T+6}, v{T+6}, v{T+12}
    v_mul_f32 v{vFr}, s{sL2}, v{vFr}
    v_mul_f32 v{T}, s{sL2}, v{T}
    v_mul_f32 v{T+2}, s{sL2}, v{T+2}
    v_mul_f32 v{T+4}, s{sL2}, v{T+4}
    v_mul_f32 v{T+6}, s{sL2}, v{T+6}
    v_exp_f32 v{vFr}, v{vFr}
    v_exp_f32 v{T}, v{T}
    v_exp_f32 v{T+2}, v{T+2}
    v_exp_f32 v{T+4}, v{T+4}
    v_exp_f32 v{T+6}, v{T+6}
    v_mul_f32 v{T+14}, v{T}, v{T+1}
    v_fmac_f32 v{T+14}, v{T+2}, v{T+3}
    v_fmac_f32 v{T+14}, v{T+4}, v{T+5}
    v_fmac_f32 v{T+14}, v{T+6}, v{T+7}
    v_mov_b32 v{T+13}, s{sTAG}
    v_mov_b32 v{T+15}, s{sTAG}
    v_mov_b32 v{T}, s{sMLP}
    s_lshl_b64 exec, 1, s44
    """)
    fs_store(g, f"global_store_dwordx4 v{T}, {r(T+12,4)}, {sr(pWS,2)}", "mlpub")
    e("s_mov_b64 exec, -1")
    e(f"v_lshl_add_u32 v{vQG}, v{VW}, 11, v{VL16}")
    g.stamp("mlp")
    for n in range(npre, 3):
        g.wait(f"v{2*n+1}")
        if n == 2: e("s_barrier")
        for ee in range(8): vperm(n, ee)
    g.wait("v7")
    g.stamp("v")
    def pv(ee): e(f"v_mfma_f32_16x16x32_bf16 {r(DA+4*ee,4)}, {r(P4,4)}, {r(TV+4*ee,4)}, 0")
    def sc(ee): e(f"v_mul_f32 v{OUT+ee}, v{DA+4*ee}, v{vFr}")
    for ee in range(3): vperm(3, ee)
    for ee in range(8):
        pv(ee)
        if ee + 3 < 8: vperm(3, ee + 3)
        if ee >= 5: sc(ee - 5)
    sc(3)
    e(f"ds_write_b128 v{vQG}, {r(OUT,4)} offset:{L_O}")
    sc(4); e("s_nop 0"); sc(5); e("s_nop 0"); sc(6); e("s_nop 0"); sc(7)
    e(f"""
    ds_write_b128 v{vQG}, {r(OUT+4,4)} offset:{L_O+1024}
    s_waitcnt lgkmcnt(0)
    s_barrier
    """)
    sum4(g, vOrd, L_O, 4)
    fs_store(g, f"global_store_dwordx4 v{vOW}, {r(T+12,4)}, {sr(pWS,2)}", "opub")
    g.stamp("opub")
    e("v_or_b32 v0, 256, v0\ns_branch L_out" if o.stamps else "s_endpgm")
    cut3 = len(g.lines)
    g.lines = g.lines[:cut1] + g.lines[cut2:cut3] + g.lines[cut1:cut2]
    g.newrole([], 0)
    e("L_out:")
    if o.stamps:
        assert sST + 2*g.maxst <= 98, g.maxst
        e(f"""
        s_mov_b64 exec, -1
        s_waitcnt vmcnt(0)
        s_memtime s[98:99]
        s_memrealtime s[46:47]
        v_mov_b32 v{VST}, 0
        s_waitcnt lgkmcnt(0)
        """)
        for k in range(g.maxst): e(f"v_writelane_b32 v{VST}, s{sST+2*k}, {k}")
        e(f"""
        v_writelane_b32 v{VST}, s98, 61
        v_writelane_b32 v{VST}, s100, 62
        v_writelane_b32 v{VST}, s46, 63
        v_writelane_b32 v{VST}, s{sSPIN}, 59
        v_writelane_b32 v{VST}, s{sCO}, 60
        s_lshl_b32 s45, s2, 11
        s_add_u32 s45, s45, {STAMPS:#x}
        v_lshl_add_u32 v{T}, v0, 2, s45
        global_store_dword v{T}, v{VST}, {sr(pWS,2)}
        """)
    e("L_end:\ns_endpgm")
    for t in g.tail: e(t)
    e("L_code_end:")
    if o.stamps:
        z = [f"    s_mov_b32 s{sST+2*k}, 0" for k in range(1, g.maxst)]
        g.lines[3:3] = z
    return g

HEADER = open(f"cdna_kernels/{NAME}.s.ref").read().split("; Override launch geometry")[0]

def emit(o, path):
    g = build(o)
    errs = hazard.check(g.lines)
    for x in errs: print(x, file=sys.stderr)
    txt = HEADER
    txt += f"; @launch grid=(256,1,1) block=(512,1,1) lds={LDS_BYTES}\n"
    txt += f'.amdgcn_target "amdgcn-amd-amdhsa--gfx950"\n.text\n.globl {NAME}_kernel\n.p2align 12\n.type {NAME}_kernel,@function\n'
    txt += f".set CODE_BYTES, L_code_end - {NAME}_kernel\n"
    txt += "\n".join(g.lines) + "\n"
    txt += f'''.section .rodata,"a"
.p2align 6
.amdhsa_kernel {NAME}_kernel
  .amdhsa_next_free_vgpr {NVGPR}
  .amdhsa_next_free_sgpr {102 if o.stamps else 56}
  .amdhsa_accum_offset {NVGPR}
  .amdhsa_group_segment_fixed_size 0
  .amdhsa_kernarg_size 88
  .amdhsa_user_sgpr_count 2
  .amdhsa_user_sgpr_kernarg_segment_ptr 1
  .amdhsa_system_sgpr_workgroup_id_x 1
  .amdhsa_float_denorm_mode_32 3
  .amdhsa_float_denorm_mode_16_64 3
.end_amdhsa_kernel
'''
    open(path, "w").write(txt)
    if o.stamps: open(path + ".names", "w").write("\n".join(" ".join(n) for n in g.allnames))
    return len(errs)

if __name__ == "__main__":
    ap = argparse.ArgumentParser()
    ap.add_argument("out")
    ap.add_argument("--stamps", action="store_true")
    ap.add_argument("--outpol", default="")
    ap.add_argument("--ptpol", default="nt")
    ap.add_argument("--ptpos", type=int, default=0)
    ap.add_argument("--ptab", type=int, default=1)
    ap.add_argument("--tlbout", type=int, default=1)
    ap.add_argument("--s0", type=int, default=1)
    ap.add_argument("--s1", type=int, default=0)
    ap.add_argument("--lay", default="A")
    ap.add_argument("--ri", type=int, default=1)
    ap.add_argument("--rg", type=int, default=0)
    ap.add_argument("--s3", type=int, default=0)
    ap.add_argument("--gap", type=int, default=4)
    ap.add_argument("--k1", type=int, default=8)
    ap.add_argument("--w1cnt", type=int, default=0)
    ap.add_argument("--gate", type=int, default=8)
    ap.add_argument("--prog", default="wk0,v,v,wk1,v,p,wk2,v,wk5,q,b,v,v,wk7,v,v")
    ap.add_argument("--woa", type=int, default=8)
    ap.add_argument("--opos", type=int, default=1)
    o = ap.parse_args()
    sys.exit(1 if emit(o, o.out) else 0)
```

```python
import sys, struct, argparse
sys.path.insert(0, "gen")
import hazard

NAME = "parallel_sum__sliding_block_cached__dense_activation_silu__decode"
def f2u(x): return struct.unpack("<I", struct.pack("<f", x))[0]
LOG2E = f2u(1.4426950408889634); SCALE = f2u(128 ** -0.5); EPS = f2u(1e-5)

OREC, AREC, BREC, QREC, HREC, MLREC, EPOCH = 0x0, 0x100000, 0x140000, 0x180000, 0x1A0000, 0x1F0000, 0x1F8000
SDELTA = 0x40000
STAMPS = 0x400000
L_RED, L_Q, L_ML, L_CO, L_CNT, L_O, L_B, L_A = 0, 2048, 3072, 3328, 3392, 4096, 12288, 14336
LDS_BYTES = 16384
SPIN_LIMIT = 0x40000

class G:
    def __init__(s, opt):
        s.o = opt; s.lines = []; s.vm = []; s.nst = 0; s.lab = 0; s.names = []; s.tail = []; s.allnames = []; s.maxst = 0
    def e(s, t):
        for ln in t.strip("\n").split("\n"):
            if not ln.strip(): continue
            s.lines.append("    " + ln.strip() if not ln.strip().endswith(":") else ln.strip())
    def c(s, t): s.lines.append("    ; " + t)
    def vmem(s, t, name):
        s.e(t); s.vm.append(name)
    def cnt(s, name):
        idx = max(k for k, n in enumerate(s.vm) if n == name)
        return len(s.vm) - 1 - idx
    def wait(s, name, extra=""):
        s.e(f"s_waitcnt vmcnt({s.cnt(name)}) {extra}".strip())
    def stamp(s, label=""):
        if s.o.echo == label: s.e("s_memtime s[90:91]")
        if not s.o.stamps: return
        k = s.nst; s.nst += 1; s.maxst = max(s.maxst, s.nst)
        s.e(f"s_memtime s[{sST+2*k}:{sST+2*k+1}]")
        s.names.append(label)
    def newrole(s, vm, nst):
        s.allnames.append(s.names); s.names = s.names[:nst]; s.nst = nst; s.vm = list(vm)
    def label(s, base):
        s.lab += 1; return f"L_{base}_{s.lab}"

def r(b, n=1): return f"v{b}" if n == 1 else f"v[{b}:{b+n-1}]"
def sr(b, n=1): return f"s{b}" if n == 1 else f"s[{b}:{b+n-1}]"

TID, VL, VL16, VTAG = 0, 1, 2, 3
T = 4
DUM, VTAGM, VW, VST = 20, 21, 22, 23
X8, XQ, XH = 24, 28, 30
HG = 24
WQ, W1 = 32, 48
AQ, AH = 56, 64
W2 = 72
WO = 80
WOP = 32
MLG, OG = 48, 64
vW2o, vWOo, vWOo2, vPub, vRedW, vOG, vMLG, vFin, vL8, vXres, vOut, vHG, vPT, vBp, vT8 = range(96, 111)
K, V = 24, 56
TV = K
QG = 88
S = 104
Q = 112
DA = 88
OUT = 56
vKo, vVo, vOW, vQrd, vOrd, vQG, vFr = range(120, 127)
NVGPR = 128
pX, pK, pV, pWQ, pWO, pW1, pW2, pOUT, pWS = 4, 6, 8, 10, 12, 16, 18, 20, 24
sG, sI, sW, sTAG, sLO, sHI = 26, 27, 28, 29, 30, 31
sM, sSC, sL2 = 32, 40, 42
sH = 44
sO = 32
sR, sSPIN, sXRES, sMLP = 22, 14, 15, 3
sXCC, sCO, pWS2, pWSX, sCNT = 48, 49, 50, 52, 54
sQM = 0
sST = 56

def dpp(g, v, ctrl, op="add"):
    g.e(f"v_{op}_f32_dpp v{v}, v{v}, v{v} {ctrl} bank_mask:0xf")
def wave_sum_to_sgpr(g, v, sd):
    for c in ("row_ror:8 row_mask:0xf", "row_ror:4 row_mask:0xf", "row_ror:2 row_mask:0xf", "row_ror:1 row_mask:0xf",
              "row_bcast:15 row_mask:0xa", "row_bcast:31 row_mask:0xc"):
        g.e("s_nop 1"); dpp(g, v, c)
    g.e(f"s_nop 0\nv_readlane_b32 s{sd}, v{v}, 63\ns_nop 1")
def bf16r(g, d, s_):
    g.e(f"v_cvt_pk_bf16_f32 v{d}, v{s_}, v{s_}\nv_lshlrev_b32 v{d}, 16, v{d}")
def xor_reduce(g, v, t, op, bits):
    for b in bits:
        sw = "v_permlane32_swap_b32" if b == 5 else "v_permlane16_swap_b32"
        g.e(f"v_mov_b32 v{t}, v{v}\ns_nop 1\n{sw} v{v}, v{t}\nv_{op}_f32 v{v}, v{v}, v{t}")

def check_retry(g, name, loads, tags, first_wait, mask=None):
    slow, ok = g.label(name + "s"), g.label(name + "k")
    g.e(first_wait)
    for t in tags: g.e(f"v_cmpx_eq_u32 vcc, v{VTAG}, v{t}")
    full = "-1" if mask is None else mask
    g.e(f"s_andn2_b64 s[{sR}:{sR+1}], {full}, exec\ns_cbranch_scc1 {slow}\n{ok}:")
    if mask is not None: g.e("s_mov_b64 exec, -1")
    t_ = [f"{slow}:\ns_sub_u32 s{sSPIN}, s{sSPIN}, 1\ns_cbranch_scc1 L_end\ns_mov_b64 exec, s[{sR}:{sR+1}]"] + loads + ["s_waitcnt vmcnt(0)"]
    t_ += [f"v_cmpx_eq_u32 vcc, v{VTAG}, v{t}" for t in tags]
    t_.append(f"s_andn2_b64 s[{sR}:{sR+1}], s[{sR}:{sR+1}], exec\ns_cbranch_scc1 {slow}\ns_mov_b64 exec, -1\ns_branch {ok}")
    g.tail += t_

def check_retry_fs(g, name, loads, tags, first_wait):
    slow, lp, ok = g.label(name + "s"), g.label(name + "l"), g.label(name + "k")
    g.e(first_wait)
    for t in tags: g.e(f"v_cmpx_eq_u32 vcc, v{VTAGM}, v{t}")
    g.e(f"s_andn2_b64 s[{sR}:{sR+1}], -1, exec\ns_cbranch_scc1 {slow}\n{ok}:")
    t_ = [f"{slow}:\ns_mov_b32 s{sCNT}, 0\n{lp}:",
          f"s_sub_u32 s{sSPIN}, s{sSPIN}, 1\ns_cbranch_scc1 L_end",
          f"s_add_u32 s{sCNT}, s{sCNT}, 1\ns_and_b32 s55, s{sCNT}, 3\ns_cmp_eq_u32 s55, 3",
          f"s_cselect_b32 s{pWSX}, s{pWS2}, s{pWS}\ns_cselect_b32 s{pWSX+1}, s{pWS2+1}, s{pWS+1}",
          f"s_mov_b64 exec, s[{sR}:{sR+1}]"]
    t_ += [l.replace(sr(pWS,2), sr(pWSX,2)) for l in loads]
    t_.append("s_waitcnt vmcnt(0)")
    for t in tags: t_.append(f"v_xor_b32 v{T}, v{VTAG}, v{t}\nv_cmpx_gt_u32 vcc, 16, v{T}")
    t_.append(f"s_mov_b64 s[46:47], exec")
    for t in tags: t_.append(f"v_cmpx_eq_u32 vcc, v{VTAGM}, v{t}")
    t_.append(f"s_cmp_eq_u64 s[46:47], exec\ns_cselect_b32 s{sCO}, s{sCO}, 0")
    t_.append(f"s_andn2_b64 s[{sR}:{sR+1}], s[{sR}:{sR+1}], s[46:47]\ns_cbranch_scc1 {lp}\ns_mov_b64 exec, -1\ns_branch {ok}")
    g.tail += t_

def fs_store(g, text, name):
    sl, bk = g.label("st"), g.label("stb")
    g.e(f"s_cmp_eq_u32 s{sCO}, 0\ns_cbranch_scc1 {sl}")
    g.vmem(text, name)
    g.e(f"{bk}:")
    g.tail.append(f"{sl}:\n{text} sc1\ns_branch {bk}")

def tagcalc(g):
    g.e(f"""
    s_mul_i32 s{sTAG}, s{sTAG}, 0x9E3779B1
    s_add_u32 s{sTAG}, s{sTAG}, 0x7F4A7C15
    s_xor_b32 s{sXCC}, s{sXCC}, s{sTAG}
    v_mov_b32 v{VTAG}, s{sTAG}
    v_mov_b32 v{VTAGM}, s{sXCC}
    """)

def sum4(g, addr, base, stride512):
    b = base // 512
    g.e(f"""
    ds_read2st64_b64 {r(T,4)}, v{addr} offset0:{b} offset1:{b+stride512}
    ds_read2st64_b64 {r(T+4,4)}, v{addr} offset0:{b+2*stride512} offset1:{b+3*stride512}
    s_waitcnt lgkmcnt(0)
    v_pk_add_f32 {r(T,2)}, {r(T,2)}, {r(T+2,2)}
    v_pk_add_f32 {r(T+4,2)}, {r(T+4,2)}, {r(T+6,2)}
    v_add_f32 v{T+12}, v{T}, v{T+4}
    v_add_f32 v{T+14}, v{T+1}, v{T+5}
    """)

def build(o):
    g = G(o); e = g.e
    NT = "nt"
    e(f"{NAME}_kernel:")
    e("s_cmp_ge_u32 s2, 256\ns_cbranch_scc1 L_end")
    e("s_load_dwordx16 s[4:19], s[0:1], 0\ns_load_dwordx2 s[20:21], s[0:1], 64\ns_load_dwordx2 s[24:25], s[0:1], 80")
    if o.echo: e("s_memtime s[92:93]")
    if o.stamps:
        e(f"s_memrealtime s[100:101]"); g.stamp("start")
    g.c("prefetch this kernel's code into L2")
    e(f"s_getpc_b64 s[{sR}:{sR+1}]\nv_lshlrev_b32 v{T}, 4, v0\nv_min_u32 v{T}, CODE_BYTES-64, v{T}\nv_lshrrev_b32 v{VW}, 6, v0")
    g.vmem(f"global_load_dword v{DUM}, v{T}, s[{sR}:{sR+1}]", "code")
    e(f"""
    v_readfirstlane_b32 s{sW}, v{VW}
    v_and_b32 v{VL}, 63, v0
    s_and_b32 s{sG}, s2, 7
    s_lshr_b32 s{sI}, s2, 3
    v_lshlrev_b32 v{VL16}, 4, v{VL}
    s_getreg_b32 s{sXCC}, hwreg(HW_REG_XCC_ID)
    s_mov_b32 s{sLO}, 0x05040100
    s_mov_b32 s{sHI}, 0x07060302
    s_mov_b32 s36, {EPOCH:#x}
    s_lshl_b32 s43, s{sG}, 14
    s_add_u32 s43, s43, {QREC:#x}
    s_and_b32 s{sXCC}, s{sXCC}, 15
    s_cmp_ge_u32 s{sW}, 4
    s_cbranch_scc1 L_main
    """)
    vm0, nst0 = list(g.vm), g.nst
    e(f"""
    s_min_u32 s32, s{sI}, 27
    s_mul_i32 s33, s{sG}, 28
    s_add_u32 s33, s33, s32            ; u
    s_lshr_b32 s34, s33, 2
    s_and_b32 s35, s33, 3
    s_lshr_b32 s39, s{sI}, 2
    s_and_b32 s40, s{sI}, 3
    v_lshrrev_b32 v{T+2}, 3, v0
    s_lshl_b32 s41, s40, 8
    v_lshl_add_u32 v{T+3}, v{T+2}, 3, s41
    v_lshrrev_b32 v{T+10}, 2, v0
    s_lshl_b32 s41, s35, 8
    v_lshl_add_u32 v{T+4}, v{T+10}, 2, s41
    s_lshl_b32 s41, s{sG}, 10
    s_lshl_b32 s42, s39, 7
    s_add_u32 s41, s41, s42
    s_lshl_b32 s42, s40, 20
    s_add_u32 s41, s41, s42
    v_and_b32 v{T+11}, 7, v0
    v_lshl_add_u32 v{T+5}, v{T+11}, 4, s41
    v_lshl_add_u32 v{T+5}, v{T+2}, 15, v{T+5}
    v_add_u32 v{T+6}, 0x2000, v{T+5}
    v_add_u32 v{T+7}, 0x4000, v{T+5}
    v_add_u32 v{T+8}, 0x6000, v{T+5}
    s_mul_i32 s41, s35, {128*3584}
    s_lshl_b32 s42, s34, 6
    s_add_u32 s41, s41, s42
    v_and_b32 v{T+12}, 3, v0
    v_lshlrev_b32 v{T+12}, 4, v{T+12}
    v_mul_u32_u24 v{T+9}, 7168, v{T+10}
    v_add3_u32 v{T+9}, v{T+9}, v{T+12}, s41    ; w1
    s_lshl_b32 s37, s{sG}, 5
    s_add_u32 s37, s37, s{sI}           ; c' = 32g+i
    s_lshl_b32 s38, s37, 2
    s_lshr_b32 s46, s39, 1
    s_lshl_b32 s46, s46, 12
    s_add_u32 s45, s43, s46
    s_lshl_b32 s46, s40, 10
    s_add_u32 s45, s45, s46
    s_and_b32 s46, s39, 1
    s_lshl_b32 s46, s46, 9
    s_add_u32 s45, s45, s46
    s_lshl_b32 s46, s33, 8
    s_add_u32 s46, s46, {HREC-512:#x}
    v_mov_b32 v{T+13}, s45
    v_mov_b32 v{T+15}, s46
    v_cmp_lt_u32 vcc, 31, v{VL}
    s_lshl_b32 s45, s{sW}, 3
    s_lshl_b32 s46, s{sW}, 2
    v_cndmask_b32 v{T+13}, v{T+13}, v{T+15}, vcc
    v_add_u32 v{vPub}, v{T+13}, v{VL16}
    s_waitcnt lgkmcnt(0)
    """)
    g.stamp("karg")
    g.vmem(f"global_load_dwordx4 {r(X8,4)}, v{VL16}, {sr(pX,2)}", "x")
    g.vmem(f"global_load_dwordx2 {r(XQ,2)}, v{T+3}, {sr(pX,2)}", "x")
    g.vmem(f"global_load_dword v{XH}, v{T+4}, {sr(pX,2)}", "x")
    e(f"s_lshl_b32 s{sQM}, 0xff, s45\ns_lshl_b32 s{sQM+1}, 0xf, s46")
    if o.s0: e("s_barrier")
    for u in range(4):
        g.vmem(f"global_load_dwordx4 {r(WQ+4*u,4)}, v{T+5+u}, {sr(pWQ,2)} {NT}", "wq")
    g.c("bring the q/h record lines into this die's L2 ahead of the stores")
    e(f"s_mov_b64 exec, s[{sQM}:{sQM+1}]")
    g.vmem(f"global_load_dword v{DUM}, v{vPub}, {sr(pWS,2)} {o.ptpol}", "pt")
    e("s_mov_b64 exec, -1")
    for u in range(2):
        g.vmem(f"global_load_dwordx4 {r(W1+4*u,4)}, v{T+9}, {sr(pW1,2)} offset:{3584*u} {NT}", "w1")
    if o.s1 == 0: e("s_barrier")
    e(f"s_load_dword s{sTAG}, {sr(pWS,2)}, s36\ns_load_dword s{sXRES}, {sr(pX,2)}, s38")
    e("s_branch L_aux2")
    cut1 = len(g.lines)
    e("L_aux2:")
    g.c("addresses used later")
    e(f"""
    s_mov_b32 s{sSPIN}, {SPIN_LIMIT:#x}
    s_add_u32 s{pWS2}, s{pWS}, {SDELTA:#x}
    s_addc_u32 s{pWS2+1}, s{pWS+1}, 0
    s_lshl_b32 s41, s34, 15
    s_lshl_b32 s42, s35, 8
    s_add_u32 s41, s41, s42
    s_add_u32 s41, s41, 4096
    v_lshlrev_b32 v{T+3}, 2, v{VL}
    v_lshl_add_u32 v{vW2o}, v{VW}, 13, v{T+3}
    v_add_u32 v{vW2o}, s41, v{vW2o}
    s_lshl_b32 s44, s{sG}, 3
    s_add_u32 s44, s44, s39             ; p = 8g+a
    s_lshl_b32 s45, s44, 16
    s_lshl_b32 s46, s40, 8
    s_add_u32 s45, s45, s46
    s_add_u32 s45, s45, 4096
    v_lshl_add_u32 v{vWOo}, v{VW}, 14, v{T+3}
    v_add_u32 v{vWOo}, s45, v{vWOo}
    v_add_u32 v{vWOo2}, 0x2000, v{vWOo}
    s_lshl_b32 s45, s40, 16
    s_lshl_b32 s46, s44, 10
    s_add_u32 s45, s45, s46
    s_add_u32 s45, s45, {AREC:#x}
    s_lshl_b32 s46, s35, 16
    s_lshl_b32 s47, s34, 10
    s_add_u32 s46, s46, s47
    s_add_u32 s46, s46, {BREC:#x}
    s_cmp_lt_u32 s{sW}, 2
    s_cselect_b32 s45, s45, s46
    v_add_u32 v{vBp}, s45, v{VL16}
    v_and_b32 v{T+4}, 127, v0
    v_lshl_add_u32 v{vPT}, v{T+4}, 3, s45
    s_lshr_b32 s45, s{sG}, 1
    s_lshl_b32 s45, s45, 16
    s_and_b32 s46, s37, 63
    s_lshl_b32 s46, s46, 4
    s_add_u32 s45, s45, s46
    s_add_u32 s45, s45, {AREC:#x}
    v_lshl_add_u32 v{vFin}, v{VL}, 10, s45
    s_add_u32 s45, s45, {BREC-AREC:#x}
    v_min_u32 v{T+4}, 55, v{VL}
    v_lshl_add_u32 v{T+4}, v{T+4}, 10, s45
    s_cmp_eq_u32 s{sW}, 1
    s_cselect_b64 vcc, -1, 0
    v_cndmask_b32 v{vBp}, v{vBp}, v{T+4}, vcc
    v_lshrrev_b32 v{vOut}, 5, v{VL}
    v_lshl_add_u32 v{vOut}, v{vOut}, 1, s38
    s_add_u32 s47, s47, {HREC:#x}
    v_lshl_add_u32 v{vHG}, v{VW}, 6, s47
    v_lshl_add_u32 v{vHG}, v{T+11}, 3, v{vHG}
    v_bfe_u32 v{T+4}, v0, 3, 2
    v_lshl_add_u32 v{vHG}, v{T+4}, 8, v{vHG}
    v_lshlrev_b32 v{vRedW}, 5, v{T+11}
    v_bfe_u32 v{T+4}, v0, 4, 1
    v_lshl_add_u32 v{vRedW}, v{T+4}, 3, v{vRedW}
    v_bfe_u32 v{T+4}, v0, 5, 1
    v_lshl_add_u32 v{vRedW}, v{T+4}, 2, v{vRedW}
    v_lshl_add_u32 v{vRedW}, v{VW}, 9, v{vRedW}
    s_lshl_b32 s46, s44, 14
    v_lshl_add_u32 v{vOG}, v{VW}, 12, s46
    v_add_u32 v{vOG}, v{VL16}, v{vOG}
    s_lshr_b32 s46, s44, 1
    s_lshl_b32 s46, s46, 9
    s_add_u32 s46, s46, {MLREC:#x}
    v_lshrrev_b32 v{T+4}, 3, v{VL}
    v_lshl_add_u32 v{vMLG}, v{T+4}, 4, s46
    v_lshlrev_b32 v{vL8}, 3, v{VL}
    v_lshlrev_b32 v{vT8}, 3, v0
    s_mov_b32 s{sL2}, {LOG2E:#x}
    """)
    g.c("layernorm statistics")
    g.wait("x")
    if o.s1 == 1: e("s_barrier")
    U = T
    for d in range(4):
        e(f"v_lshlrev_b32 v{U+2*d}, 16, v{X8+d}\nv_and_b32 v{U+2*d+1}, 0xffff0000, v{X8+d}")
    e(f"""
    v_pk_add_f32 {r(T+8,2)}, {r(U,2)}, {r(U+2,2)}
    v_pk_add_f32 {r(T+10,2)}, {r(U+4,2)}, {r(U+6,2)}
    v_pk_add_f32 {r(T+8,2)}, {r(T+8,2)}, {r(T+10,2)}
    v_add_f32 v{T+8}, v{T+8}, v{T+9}
    """)
    wave_sum_to_sgpr(g, T+8, 44)
    e(f"v_mov_b32 v{T+12}, 0x3b000000\nv_mul_f32 v{T+10}, s44, v{T+12}")
    for d in range(4):
        e(f"v_pk_add_f32 {r(U+2*d,2)}, {r(U+2*d,2)}, {r(T+10,2)} op_sel_hi:[1,0] neg_lo:[0,1] neg_hi:[0,1]")
    e(f"v_pk_mul_f32 {r(T+8,2)}, {r(U,2)}, {r(U,2)}")
    for d in range(1, 4):
        e(f"v_pk_fma_f32 {r(T+8,2)}, {r(U+2*d,2)}, {r(U+2*d,2)}, {r(T+8,2)}")
    e(f"v_add_f32 v{T+8}, v{T+8}, v{T+9}")
    wave_sum_to_sgpr(g, T+8, 44)
    e(f"v_mul_f32 v{T+11}, s44, v{T+12}")
    bf16r(g, T+10, T+10)
    bf16r(g, T+11, T+11)
    e(f"v_add_f32 v{T+11}, {EPS:#x}, v{T+11}")
    bf16r(g, T+11, T+11)
    e(f"v_sqrt_f32 v{T+11}, v{T+11}\ns_nop 0")
    bf16r(g, T+11, T+11)
    e(f"v_rcp_f32 v{T+12}, v{T+11}")
    for k, x in enumerate((XQ, XQ+1, XH)):
        a = U + 2*k
        e(f"""
        v_lshlrev_b32 v{a}, 16, v{x}
        v_and_b32 v{a+1}, 0xffff0000, v{x}
        v_pk_add_f32 {r(a,2)}, {r(a,2)}, {r(T+10,2)} op_sel_hi:[1,0] neg_lo:[0,1] neg_hi:[0,1]
        v_cvt_pk_bf16_f32 v{x}, v{a}, v{a+1}
        v_lshlrev_b32 v{a}, 16, v{x}
        v_and_b32 v{a+1}, 0xffff0000, v{x}
        v_pk_mul_f32 {r(a,2)}, {r(a,2)}, {r(T+12,2)} op_sel_hi:[1,0]
        v_cvt_pk_bf16_f32 v{x}, v{a}, v{a+1}
        """)
    g.stamp("ln")
    e("s_waitcnt lgkmcnt(0)")
    tagcalc(g)
    e(f"""
    v_mov_b32 v{T+13}, s{sXCC}
    v_mov_b32 v{T+15}, s{sXCC}
    v_cmp_gt_u32 vcc, 32, v{VL}
    s_lshl_b32 s45, s{sXRES}, 16
    s_and_b32 s46, s{sXRES}, 0xffff0000
    v_mov_b32 v{T}, s45
    v_mov_b32 v{T+1}, s46
    v_cndmask_b32 v{vXres}, v{T+1}, v{T}, vcc
    v_mov_b32 v{T+8}, 0
    v_mov_b32 v{T+9}, 1
    """)
    def last_publishes(A, rors, mask, off, cnt, lo, hi, name):
        for k in range(0, 8, 2): e(f"v_permlane32_swap_b32 v{A+k}, v{A+k+1}")
        for k in range(0, 8, 2): e(f"v_add_f32 v{A+k}, v{A+k}, v{A+k+1}")
        e(f"v_permlane16_swap_b32 v{A}, v{A+2}\ns_nop 0\nv_permlane16_swap_b32 v{A+4}, v{A+6}")
        e(f"v_add_f32 v{A}, v{A}, v{A+2}\nv_add_f32 v{A+4}, v{A+4}, v{A+6}")
        for c in rors:
            e("s_nop 0")
            for v in (A, A+4): dpp(g, v, f"row_ror:{c} row_mask:0xf")
        skip = g.label("np")
        e(f"""
        s_mov_b32 exec_lo, {mask:#x}
        s_mov_b32 exec_hi, {mask:#x}
        ds_write2_b32 v{vRedW}, v{A}, v{A+4} offset0:{off} offset1:{off+4}
        s_mov_b64 exec, 1
        ds_add_rtn_u32 v{T+10}, v{T+8}, v{T+9} offset:{cnt}
        s_waitcnt lgkmcnt(0)
        v_readfirstlane_b32 s45, v{T+10}
        s_mov_b32 exec_lo, {lo:#x}
        s_mov_b32 exec_hi, {hi:#x}
        s_cmp_lg_u32 s45, 3
        s_cbranch_scc1 {skip}
        """)
        sum4(g, vL8, L_RED, 1)
        e(f"""
        global_store_dwordx4 v{vPub}, {r(T+12,4)}, {sr(pWS,2)}
        global_store_dwordx4 v{vPub}, {r(T+12,4)}, {sr(pWS2,2)} sc1
        """)
        g.stamp(name)
        if name == "qpub":
            e(f"s_waitcnt vmcnt(2)\ns_branch L_w1ok\n{skip}:\ns_waitcnt vmcnt(0)\nL_w1ok:\ns_mov_b64 exec, -1")
        else:
            e(f"{skip}:\ns_mov_b64 exec, -1")
    g.c("q partial slice")
    g.wait("wq")
    if o.s3: e("s_barrier")
    g.stamp("wq")
    for half in range(2):
        for d in range(4):
            a, b = WQ + 8*half + d, WQ + 8*half + 4 + d
            e(f"v_perm_b32 v{T+2*d}, v{b}, v{a}, s{sLO}\nv_perm_b32 v{T+2*d+1}, v{b}, v{a}, s{sHI}")
        for k in range(8):
            e(f"v_dot2_f32_bf16 v{AQ+k}, v{T+k}, v{XQ+half}, {'0' if half == 0 else 'v%d' % (AQ+k)}")
    last_publishes(AQ, (8,), 0x00ff00ff, 0, L_CNT, 0xffffffff, 0, "qpub")
    g.c("h partial slice")
    g.stamp("w1")
    for d in range(4):
        a, b = W1 + d, W1 + 4 + d
        e(f"v_perm_b32 v{T+2*d}, v{b}, v{a}, s{sLO}\nv_perm_b32 v{T+2*d+1}, v{b}, v{a}, s{sHI}")
    for k in range(8):
        e(f"v_dot2_f32_bf16 v{AH+k}, v{T+k}, v{XH}, 0")
    last_publishes(AH, (8, 4), 0x000f000f, 64, L_CNT+4, 0, 0xffff, "hpub")
    e(f"""
    s_cmp_eq_u32 s{sW}, 0
    s_cselect_b32 s45, {L_A-L_B}, 0
    v_add_u32 v{vRedW}, s45, v{vL8}
    v_mov_b32 v{T+13}, s{sTAG}
    v_mov_b32 v{T+15}, s{sTAG}
    """)
    for tok in o.prog.split(","):
        if tok == "b": e("s_barrier")
    e("s_barrier")
    g.stamp("B2")
    h_loads = [f"global_load_dwordx2 {r(HG,2)}, v{vHG}, {sr(pWS,2)} sc1"]
    g.vmem(h_loads[0], "hg")
    for n in range(8):
        g.vmem(f"global_load_dword v{W2+n}, v{vW2o}, {sr(pW2,2)} offset:{n*1024-4096} {NT}", "w2")
    def woload(a, b):
        for n in range(a, b):
            g.vmem(f"global_load_dword v{WO+n}, v{vWOo if n < 8 else vWOo2}, {sr(pWO,2)} offset:{(n & 7)*1024-4096} {NT}", f"wo{n}")
    if o.ptab:
        g.vmem(f"global_load_dword v{DUM}, v{vPT}, {sr(pWS,2)}", "pt")
    if o.tlbout:
        g.vmem(f"global_load_ushort v{DUM}, v{vOut}, {sr(pOUT,2)}", "pt")
    woload(0, o.woa)
    e("s_barrier")
    e("s_barrier")
    g.stamp("B3b")
    ml_loads = [f"global_load_dwordx4 {r(MLG+4*u,4)}, v{vMLG}, {sr(pWS,2)} offset:{128*u} sc1" for u in range(4)]
    o_loads = [f"global_load_dwordx4 {r(OG+4*u,4)}, v{vOG}, {sr(pWS,2)} offset:{1024*u} sc1" for u in range(4)]
    for ld in ml_loads: g.vmem(ld, "ml")
    woload(o.woa, 16)
    e("s_barrier")
    g.stamp("B4")
    g.c("h = silu(sum of 4 partials), second FFN GEMV")
    check_retry_fs(g, "h", h_loads, [HG+1], f"s_waitcnt vmcnt({g.cnt('hg')})")
    e("s_nop 2")
    dpp(g, HG, "row_ror:8 row_mask:0xf")
    xor_reduce(g, HG, T, "add", (4,))
    bf16r(g, HG, HG)
    e(f"""
    v_mul_f32 v{T}, {LOG2E | 0x80000000:#x}, v{HG}
    v_exp_f32 v{T}, v{T}
    s_nop 0
    v_add_f32 v{T}, 1.0, v{T}
    v_rcp_f32 v{T}, v{T}
    s_nop 0
    v_mul_f32 v{HG}, v{HG}, v{T}
    s_nop 1
    v_mov_b32_dpp v{T}, v{HG} quad_perm:[1,0,3,2] row_mask:0xf bank_mask:0xf
    v_cvt_pk_bf16_f32 v{HG}, v{HG}, v{T}
    s_nop 0
    """)
    for n in range(4): e(f"v_readlane_b32 s{sH+n}, v{HG}, {2*n}")
    g.wait("w2")
    for n in range(4):
        e(f"v_perm_b32 v{T+2+2*n}, v{W2+2*n+1}, v{W2+2*n}, s{sLO}\nv_perm_b32 v{T+2+2*n+1}, v{W2+2*n+1}, v{W2+2*n}, s{sHI}")
    for n in range(4):
        for c in range(2):
            e(f"v_dot2_f32_bf16 v{T+10+c}, v{T+2+2*n+c}, s{sH+n}, {'0' if n == 0 else 'v%d' % (T+10+c)}")
    e(f"""
    s_nop 2
    ds_write_b64 v{vT8}, {r(T+10,2)} offset:{L_B}
    """)
    g.stamp("ffn")
    def woperm(a, b):
        for n in range(a, b):
            e(f"v_perm_b32 v{WOP+2*n}, v{WO+2*n+1}, v{WO+2*n}, s{sLO}\nv_perm_b32 v{WOP+2*n+1}, v{WO+2*n+1}, v{WO+2*n}, s{sHI}")
    def oissue():
        for ld in o_loads: g.vmem(ld, "o")
    if o.opos == 0: oissue()
    g.c("softmax weights of the 32 splits")
    check_retry(g, "ml", ml_loads, [MLG+4*u+k for u in range(4) for k in (1, 3)], f"s_waitcnt vmcnt({g.cnt('ml')})")
    g.stamp("ml")
    if o.opos == 1: oissue()
    M_, L_ = T, T+1
    e(f"""
    v_max3_f32 v{M_}, v{MLG}, v{MLG+4}, v{MLG+8}
    v_max_f32 v{M_}, v{M_}, v{MLG+12}
    s_nop 2
    v_max_f32_dpp v{M_}, v{M_}, v{M_} row_ror:8 row_mask:0xf bank_mask:0xf
    """)
    xor_reduce(g, M_, T+2, "max", (5, 4))
    for u in range(4): e(f"v_sub_f32 v{MLG+4*u}, v{MLG+4*u}, v{M_}")
    for u in range(4): e(f"v_mul_f32 v{MLG+4*u}, s{sL2}, v{MLG+4*u}")
    for u in range(4): e(f"v_exp_f32 v{MLG+4*u}, v{MLG+4*u}")
    e(f"v_mul_f32 v{L_}, v{MLG}, v{MLG+2}")
    for u in range(1, 4): e(f"v_fmac_f32 v{L_}, v{MLG+4*u}, v{MLG+4*u+2}")
    e(f"s_nop 1\nv_add_f32_dpp v{L_}, v{L_}, v{L_} row_ror:8 row_mask:0xf bank_mask:0xf")
    xor_reduce(g, L_, T+2, "add", (5, 4))
    e(f"v_rcp_f32 v{L_}, v{L_}")
    woperm(0, o.woa // 2)
    if o.woa < 2: e("s_nop 0")
    for u in range(4): e(f"v_mul_f32 v{MLG+4*u}, v{MLG+4*u}, v{L_}")
    g.stamp("wgt")
    if o.opos == 2: oissue()
    g.wait("wo15")
    g.stamp("wo")
    if o.opos == 3: oissue()
    woperm(o.woa // 2, 8)
    check_retry(g, "o", o_loads, [OG+4*u+k for u in range(4) for k in (1, 3)], "s_waitcnt vmcnt(0)")
    g.stamp("ogot")
    a0, a1 = T, T+1
    e(f"v_mul_f32 v{a0}, v{MLG}, v{OG}\nv_mul_f32 v{a1}, v{MLG}, v{OG+2}")
    for u in range(1, 4): e(f"v_fmac_f32 v{a0}, v{MLG+4*u}, v{OG+4*u}\nv_fmac_f32 v{a1}, v{MLG+4*u}, v{OG+4*u+2}")
    e(f"""
    s_nop 1
    v_permlane32_swap_b32 v{a0}, v{a1}
    v_add_f32 v{a0}, v{a0}, v{a1}
    s_nop 1
    v_add_f32_dpp v{a0}, v{a0}, v{a0} row_ror:8 row_mask:0xf bank_mask:0xf
    v_mov_b32 v{a1}, v{a0}
    s_nop 1
    v_permlane16_swap_b32 v{a0}, v{a1}
    v_add_f32 v{a0}, v{a0}, v{a1}
    v_mov_b32 v{a1}, v{a0}
    s_nop 1
    v_permlane32_swap_b32 v{a0}, v{a1}
    v_cvt_pk_bf16_f32 v{a0}, v{a0}, v{a1}
    s_nop 0
    """)
    for n in range(8): e(f"v_readlane_b32 s{sO+n}, v{a0}, {n}")
    for n in range(8):
        for c in range(2):
            e(f"v_dot2_f32_bf16 v{T+8+c}, v{WOP+2*n+c}, s{sO+n}, {'0' if n == 0 else 'v%d' % (T+8+c)}")
    e(f"""
    s_bitcmp1_b32 s{sW}, 0
    s_nop 1
    ds_write_b64 v{vT8}, {r(T+8,2)} offset:{L_A}
    s_waitcnt lgkmcnt(0)
    s_barrier
    s_cbranch_scc1 L_final
    """)
    sum4(g, vRedW, L_B, 1)
    e(f"global_store_dwordx4 v{vBp}, {r(T+12,4)}, {sr(pWS,2)} sc1")
    g.stamp("apub")
    e(f"s_branch L_out\nL_final:\ns_cmp_lg_u32 s{sW}, 1\ns_cbranch_scc1 L_out")
    def final_reduce(dst, src):
        e(f"""
        s_nop 1
        v_permlane32_swap_b32 v{src}, v{src+2}
        v_add_f32 v{dst}, v{src}, v{src+2}
        v_mov_b32 v{src+2}, v{dst}
        s_nop 1
        v_permlane16_swap_b32 v{dst}, v{src+2}
        v_add_f32 v{dst}, v{dst}, v{src+2}
        """)
        for c in (8, 4, 2, 1):
            e("s_nop 1"); dpp(g, dst, f"row_ror:{c} row_mask:0xf")
    ab_loads = [f"global_load_dwordx4 {r(T+8,4)}, v{vFin}, {sr(pWS,2)} sc1", f"global_load_dwordx4 {r(T+4,4)}, v{vBp}, {sr(pWS,2)} sc1"]
    if o.gate: e(f"s_sleep {o.gate}")
    for ld in ab_loads: e(ld)
    e(f"s_mov_b32 s{sQM}, -1\ns_mov_b32 s{sQM+1}, 0xffffff")
    check_retry(g, "a", ab_loads, [T+9, T+11, T+5, T+7], "s_waitcnt vmcnt(0)")
    g.stamp("agot")
    e(f"""
    v_cndmask_b32 v{T+4}, 0, v{T+4}, s[{sQM}:{sQM+1}]
    v_cndmask_b32 v{T+6}, 0, v{T+6}, s[{sQM}:{sQM+1}]
    v_permlane32_swap_b32 v{T+8}, v{T+10}
    s_nop 0
    v_permlane32_swap_b32 v{T+4}, v{T+6}
    v_add_f32 v{T+1}, v{T+8}, v{T+10}
    v_add_f32 v{T}, v{T+4}, v{T+6}
    s_nop 1
    v_permlane16_swap_b32 v{T+1}, v{T}
    v_add_f32 v{T+1}, v{T+1}, v{T}
    """)
    for c in (8, 4, 2, 1):
        e("s_nop 1"); dpp(g, T+1, f"row_ror:{c} row_mask:0xf")
    g.c("rows 0/2 hold A of the two columns, rows 1/3 hold B")
    bf16r(g, T+1, T+1)
    e(f"v_mov_b32 v{T}, v{T+1}\ns_nop 1\nv_permlane16_swap_b32 v{T+1}, v{T}")
    e(f"v_add_f32 v{T+1}, v{vXres}, v{T+1}")
    bf16r(g, T+1, T+1)
    e(f"""
    v_add_f32 v{T+1}, v{T+1}, v{T}
    v_cvt_pk_bf16_f32 v{T+1}, v{T+1}, v{T+1}
    s_mov_b32 exec_lo, 1
    s_mov_b32 exec_hi, 1
    global_store_short v{vOut}, v{T+1}, {sr(pOUT,2)} {o.outpol}
    s_cmp_lg_u32 s2, 0
    s_cbranch_scc1 L_out
    v_mov_b32 v{T+2}, {EPOCH:#x}
    global_store_dword v{T+2}, v{VTAG}, {sr(pWS,2)} sc1
    """)
    g.stamp("fin")
    if o.echo:
        e(f"""
        s_memtime s[94:95]
        s_waitcnt lgkmcnt(0)
        s_sub_u32 s90, s90, s92
        s_mul_i32 s90, s90, {o.echok}
        L_echo:
        s_memtime s[96:97]
        s_waitcnt lgkmcnt(0)
        s_sub_u32 s96, s96, s94
        s_cmp_lt_u32 s96, s90
        s_cbranch_scc1 L_echo
        """)
    e("s_branch L_out" if o.stamps else "s_endpgm")
    g.newrole(vm0, nst0)
    cut2 = len(g.lines)
    e("L_main:")
    e(f"""
    v_and_b32 v0, 255, v0
    v_and_b32 v{VW}, 3, v{VW}
    s_and_b32 s{sW}, s{sW}, 3
    s_lshl_b32 s41, s{sG}, 24
    s_lshl_b32 s42, s{sI}, 15
    s_add_u32 s41, s41, s42
    s_add_u32 s41, s41, 0xF00000
    v_lshl_add_u32 v{vVo}, v{VW}, {13 if o.lay == 'A' else 10}, s41
    v_and_b32 v{T+12}, 3, v0
    v_lshlrev_b32 v{T+12}, 4, v{T+12}
    v_bfe_u32 v{T+13}, v0, 2, 2
    v_lshl_add_u32 v{vQrd}, v{T+13}, 8, v{T+12}
    v_bfe_u32 v{T+13}, v0, 4, 2
    v_lshl_add_u32 v{vQrd}, v{T+13}, 6, v{vQrd}
    v_add_u32 v{vKo}, v{vQrd}, v{vVo}
    v_add_u32 v{vVo}, v{VL16}, v{vVo}
    v_lshl_add_u32 v{vQG}, v{VW}, 12, s43
    v_add_u32 v{vQG}, v{VL16}, v{vQG}
    s_lshl_b32 s45, s{sG}, 17
    s_lshl_b32 s46, s{sI}, 7
    s_add_u32 s46, s46, s45
    v_lshrrev_b32 v{T+2}, 3, v0
    v_and_b32 v{T+11}, 7, v0
    v_lshl_add_u32 v{vOW}, v{T+2}, 12, s46
    v_lshl_add_u32 v{vOW}, v{T+11}, 4, v{vOW}
    v_lshrrev_b32 v{T+10}, 2, v0
    v_lshlrev_b32 v{vOrd}, 4, v{T+10}
    v_bfe_u32 v{T+4}, v0, 1, 1
    v_lshl_add_u32 v{vOrd}, v{T+4}, 10, v{vOrd}
    v_and_b32 v{T+4}, 1, v0
    v_lshl_add_u32 v{vOrd}, v{T+4}, 3, v{vOrd}
    s_lshl_b32 s45, s{sG}, 2
    s_add_u32 s45, s45, s{sW}
    s_lshl_b32 s45, s45, 5
    s_add_u32 s45, s45, s{sI}
    s_lshl_b32 s45, s45, 4
    s_add_u32 s{sMLP}, s45, {MLREC:#x}
    s_mov_b32 s{sCO}, 1
    v_mov_b32 v{T+6}, 0
    v_mov_b32 v{T+7}, 0
    ds_write_b64 v{T+7}, {r(T+6,2)} offset:{L_CNT}
    s_mov_b32 s47, s36
    s_mul_i32 s46, s{sG}, {o.rg}
    s_mul_i32 s45, s{sI}, {o.ri}
    s_add_u32 s46, s46, s45
    """)
    g.c("each workgroup walks its 8 load slots in a rotated order (spreads the memory channels)")
    for n in range(8):
        e(f"s_add_u32 s{sM+n}, s46, {n}\ns_and_b32 s{sM+n}, s{sM+n}, 7\ns_lshl_b32 s{sM+n}, s{sM+n}, {10 if o.lay == 'A' else 12}")
    e(f"""
    s_waitcnt lgkmcnt(0)
    s_load_dword s{sTAG}, {sr(pWS,2)}, s47
    """)
    if o.s0: e("s_barrier")
    e("s_barrier")
    def kload(n):
        e(f"v_add_u32 v{T+n%2}, s{sM+n}, v{vKo}")
        g.vmem(f"global_load_dwordx4 {r(K+4*n,4)}, v{T+n%2}, {sr(pK,2)} {NT}", f"k{n}")
        if o.gap > 1: e(f"s_nop {o.gap-2}")
    def vload(n):
        e(f"v_add_u32 v{T+n%2}, s{sM+n}, v{vVo}")
        g.vmem(f"global_load_dwordx4 {r(V+4*n,4)}, v{T+n%2}, {sr(pV,2)} {NT}", f"v{n}")
        if o.gap > 1: e(f"s_nop {o.gap-2}")
    for n in range(o.k1): kload(n)
    e(f"""
    s_mov_b32 s{sSPIN}, {SPIN_LIMIT:#x}
    s_add_u32 s{pWS2}, s{pWS}, {SDELTA:#x}
    s_addc_u32 s{pWS2+1}, s{pWS+1}, 0
    """)
    e(f"s_mov_b32 s{sSC}, {SCALE:#x}\ns_mov_b32 s{sSC+1}, {SCALE:#x}\ns_mov_b32 s{sL2}, {LOG2E:#x}\ns_mov_b32 s{sL2+1}, {LOG2E:#x}")
    e(f"""
    v_lshlrev_b32 v{T+4}, 2, v0
    s_lshl_b32 s45, s{sW}, 2
    v_mov_b32 v{T+6}, s45
    v_mov_b32 v{T+7}, 0
    v_bfe_u32 v{T+14}, v0, 2, 2
    v_lshlrev_b32 v{T+14}, 5, v{T+14}
    v_lshl_add_u32 v{T+15}, v{VW}, 3, v{T+14}
    v_bfe_u32 v{T+14}, v0, 4, 2
    v_lshlrev_b32 v{T+14}, 5, v{T+14}
    v_lshl_add_u32 v{vFr}, v{VW}, 3, v{T+14}
    s_lshl_b32 s44, s{sW}, 4
    v_mov_b32 v{T+8}, s{sMLP}
    s_waitcnt lgkmcnt(0)
    """)
    tagcalc(g)
    if o.s3: e("s_barrier")
    g.stamp("S3")
    q_loads = [f"global_load_dwordx4 {r(QG+4*u,4)}, v{vQG}, {sr(pWS,2)} offset:{1024*u} sc1" for u in range(4)]
    nk, nv, v1 = o.k1, 0, None
    for tok in o.prog.split(","):
        if tok[0] == "w": g.wait(tok[1:])
        elif tok == "k": kload(nk); nk += 1
        elif tok == "v": vload(nv); nv += 1
        elif tok == "b": e("s_barrier")
        elif tok == "p":
            g.c("bring the lines this workgroup will write later into this die's L2")
            g.vmem(f"global_load_dword v{DUM}, v{vOW}, {sr(pWS,2)} {o.ptpol}", "pt")
            g.vmem(f"global_load_dword v{DUM}, v{T+8}, {sr(pWS,2)} {o.ptpol}", "pt")
        elif tok == "q":
            assert nk == 8
            g.stamp("qwait")
            for ld in q_loads: g.vmem(ld, "qg")
            v1 = nv
    assert nk == 8 and nv == 8
    o.v1 = v1
    g.stamp("viss")
    check_retry_fs(g, "q", q_loads, [QG+4*u+k for u in range(4) for k in (1, 3)], f"s_waitcnt vmcnt({g.cnt('qg')})")
    g.stamp("qgot")
    e(f"""
    v_add_f32 v{T}, v{QG}, v{QG+4}
    v_add_f32 v{T+1}, v{QG+2}, v{QG+6}
    v_add_f32 v{T+2}, v{QG+8}, v{QG+12}
    v_add_f32 v{T+3}, v{QG+10}, v{QG+14}
    v_mov_b32 v{T+5}, s{sCO}
    v_pk_add_f32 {r(T,2)}, {r(T,2)}, {r(T+2,2)}
    v_cvt_pk_bf16_f32 v{T}, v{T}, v{T+1}
    ds_write_b32 v{T+4}, v{T} offset:{L_Q}
    ds_write_b32 v{T+6}, v{T+5} offset:{L_CO}
    s_waitcnt lgkmcnt(0)
    s_barrier
    ds_read_b128 {r(Q,4)}, v{vQrd} offset:{L_Q}
    ds_read_b128 {r(T+8,4)}, v{T+7} offset:{L_CO}
    s_waitcnt lgkmcnt(1)
    """)
    if o.stamps: e("s_waitcnt lgkmcnt(0)")
    for n in range(8): e(f"v_mfma_f32_16x16x32_bf16 {r(K+4*n,4)}, {r(K+4*n,4)}, {r(Q,4)}, 0")
    e("s_waitcnt lgkmcnt(0)")
    for c in range(4):
        for n in range(8):
            if c == 0: e(f"v_mov_b32_dpp v{S+n}, v{K+4*n} quad_perm:[0,0,0,0] row_mask:0xf bank_mask:0xf")
            else: e(f"v_add_f32_dpp v{S+n}, v{K+4*n+c}, v{S+n} quad_perm:[{c},{c},{c},{c}] row_mask:0xf bank_mask:0xf")
    g.stamp("qk")
    for n in range(4): e(f"v_cvt_pk_bf16_f32 v{T+n}, v{S+2*n}, v{S+2*n+1}")
    for n in range(4): e(f"v_lshlrev_b32 v{S+2*n}, 16, v{T+n}\nv_and_b32 v{S+2*n+1}, 0xffff0000, v{T+n}")
    for n in range(4): e(f"v_pk_mul_f32 {r(S+2*n,2)}, {r(S+2*n,2)}, {sr(sSC,2)}")
    for n in range(4): e(f"v_cvt_pk_bf16_f32 v{T+n}, v{S+2*n}, v{S+2*n+1}")
    for n in range(4): e(f"v_lshlrev_b32 v{S+2*n}, 16, v{T+n}\nv_and_b32 v{S+2*n+1}, 0xffff0000, v{T+n}")
    m, l = T+2, T+3
    e(f"""
    v_max3_f32 v{m}, v{S}, v{S+1}, v{S+2}
    v_max3_f32 v{T}, v{S+3}, v{S+4}, v{S+5}
    v_max3_f32 v{m}, v{m}, v{S+6}, v{S+7}
    v_max_f32 v{m}, v{m}, v{T}
    v_mov_b32 v{T}, v{m}
    v_and_b32 v{T+8}, v{T+8}, v{T+9}
    v_and_b32 v{T+10}, v{T+10}, v{T+11}
    v_permlane32_swap_b32 v{m}, v{T}
    v_max_f32 v{m}, v{m}, v{T}
    v_mov_b32 v{T}, v{m}
    v_and_b32 v{T+8}, v{T+8}, v{T+10}
    s_nop 0
    v_permlane16_swap_b32 v{m}, v{T}
    v_max_f32 v{m}, v{m}, v{T}
    v_readfirstlane_b32 s{sCO}, v{T+8}
    """)
    for n in range(4):
        a = S + 2*n
        e(f"v_pk_add_f32 {r(a,2)}, {r(a,2)}, {r(m,2)} op_sel_hi:[1,0] neg_lo:[0,1] neg_hi:[0,1]")
    for n in range(4):
        a = S + 2*n
        e(f"v_pk_mul_f32 {r(a,2)}, {r(a,2)}, {sr(sL2,2)}")
    for k in range(8): e(f"v_exp_f32 v{S+k}, v{S+k}")
    P4 = T + 8
    e(f"""
    v_pk_add_f32 {r(T,2)}, {r(S,2)}, {r(S+2,2)}
    v_pk_add_f32 {r(T+4,2)}, {r(S+4,2)}, {r(S+6,2)}
    v_cvt_pk_bf16_f32 v{P4}, v{S}, v{S+1}
    v_pk_add_f32 {r(T,2)}, {r(T,2)}, {r(T+4,2)}
    v_add_f32 v{l}, v{T}, v{T+1}
    v_mov_b32 v{T}, v{l}
    v_cvt_pk_bf16_f32 v{P4+1}, v{S+2}, v{S+3}
    v_cvt_pk_bf16_f32 v{P4+2}, v{S+4}, v{S+5}
    v_permlane32_swap_b32 v{l}, v{T}
    v_add_f32 v{l}, v{l}, v{T}
    v_mov_b32 v{T}, v{l}
    v_cvt_pk_bf16_f32 v{P4+3}, v{S+6}, v{S+7}
    s_nop 0
    v_permlane16_swap_b32 v{l}, v{T}
    v_add_f32 v{l}, v{l}, v{T}
    s_mov_b64 exec, 0x1111
    ds_write_b64 v{T+15}, {r(m,2)} offset:{L_ML}
    s_mov_b64 exec, -1
    """)
    g.stamp("p")
    def vperm(n, ee):
        d = ee >> 1
        e(f"v_perm_b32 v{TV+4*ee+n}, v{V+4*(2*n+1)+d}, v{V+4*(2*n)+d}, s{sHI if ee & 1 else sLO}")
    npre = min(o.v1 // 2, 2)
    if npre > 0:
        for ee in range(8): vperm(0, ee)
    e(f"""
    s_waitcnt lgkmcnt(0)
    s_barrier
    ds_read_b128 {r(T,4)}, v{T+14} offset:{L_ML}
    ds_read_b128 {r(T+4,4)}, v{T+14} offset:{L_ML+16}
    ds_read_b32 v{vFr}, v{vFr} offset:{L_ML}
    """)
    if npre > 1:
        for ee in range(8): vperm(1, ee)
    g.c("workgroup max / sum per head (lane group = head); own rescale factor")
    e(f"""
    s_waitcnt lgkmcnt(0)
    v_max3_f32 v{T+12}, v{T}, v{T+2}, v{T+4}
    v_max_f32 v{T+12}, v{T+12}, v{T+6}
    v_sub_f32 v{vFr}, v{vFr}, v{T+12}
    v_sub_f32 v{T}, v{T}, v{T+12}
    v_sub_f32 v{T+2}, v{T+2}, v{T+12}
    v_sub_f32 v{T+4}, v{T+4}, v{T+12}
    v_sub_f32 v{T+6}, v{T+6}, v{T+12}
    v_mul_f32 v{vFr}, s{sL2}, v{vFr}
    v_mul_f32 v{T}, s{sL2}, v{T}
    v_mul_f32 v{T+2}, s{sL2}, v{T+2}
    v_mul_f32 v{T+4}, s{sL2}, v{T+4}
    v_mul_f32 v{T+6}, s{sL2}, v{T+6}
    v_exp_f32 v{vFr}, v{vFr}
    v_exp_f32 v{T}, v{T}
    v_exp_f32 v{T+2}, v{T+2}
    v_exp_f32 v{T+4}, v{T+4}
    v_exp_f32 v{T+6}, v{T+6}
    v_mul_f32 v{T+14}, v{T}, v{T+1}
    v_fmac_f32 v{T+14}, v{T+2}, v{T+3}
    v_fmac_f32 v{T+14}, v{T+4}, v{T+5}
    v_fmac_f32 v{T+14}, v{T+6}, v{T+7}
    v_mov_b32 v{T+13}, s{sTAG}
    v_mov_b32 v{T+15}, s{sTAG}
    v_mov_b32 v{T}, s{sMLP}
    s_lshl_b64 exec, 1, s44
    """)
    fs_store(g, f"global_store_dwordx4 v{T}, {r(T+12,4)}, {sr(pWS,2)}", "mlpub")
    e("s_mov_b64 exec, -1")
    e(f"v_lshl_add_u32 v{vQG}, v{VW}, 11, v{VL16}")
    g.stamp("mlp")
    for n in range(npre, 3):
        g.wait(f"v{2*n+1}")
        if n == 2: e("s_barrier")
        for ee in range(8): vperm(n, ee)
    g.wait("v7")
    g.stamp("v")
    def pv(ee): e(f"v_mfma_f32_16x16x32_bf16 {r(DA+4*ee,4)}, {r(P4,4)}, {r(TV+4*ee,4)}, 0")
    def sc(ee): e(f"v_mul_f32 v{OUT+ee}, v{DA+4*ee}, v{vFr}")
    for ee in range(3): vperm(3, ee)
    for ee in range(8):
        pv(ee)
        if ee + 3 < 8: vperm(3, ee + 3)
        if ee >= 5: sc(ee - 5)
    sc(3)
    e(f"ds_write_b128 v{vQG}, {r(OUT,4)} offset:{L_O}")
    sc(4); e("s_nop 0"); sc(5); e("s_nop 0"); sc(6); e("s_nop 0"); sc(7)
    e(f"""
    ds_write_b128 v{vQG}, {r(OUT+4,4)} offset:{L_O+1024}
    s_waitcnt lgkmcnt(0)
    s_barrier
    """)
    sum4(g, vOrd, L_O, 4)
    fs_store(g, f"global_store_dwordx4 v{vOW}, {r(T+12,4)}, {sr(pWS,2)}", "opub")
    g.stamp("opub")
    e("v_or_b32 v0, 256, v0\ns_branch L_out" if o.stamps else "s_endpgm")
    cut3 = len(g.lines)
    g.lines = g.lines[:cut1] + g.lines[cut2:cut3] + g.lines[cut1:cut2]
    g.newrole([], 0)
    e("L_out:")
    if o.stamps:
        assert sST + 2*g.maxst <= 98, g.maxst
        e(f"""
        s_mov_b64 exec, -1
        s_waitcnt vmcnt(0)
        s_memtime s[98:99]
        s_memrealtime s[46:47]
        v_mov_b32 v{VST}, 0
        s_waitcnt lgkmcnt(0)
        """)
        for k in range(g.maxst): e(f"v_writelane_b32 v{VST}, s{sST+2*k}, {k}")
        e(f"""
        v_writelane_b32 v{VST}, s98, 61
        v_writelane_b32 v{VST}, s100, 62
        v_writelane_b32 v{VST}, s46, 63
        v_writelane_b32 v{VST}, s{sSPIN}, 59
        v_writelane_b32 v{VST}, s{sCO}, 60
        s_lshl_b32 s45, s2, 11
        s_add_u32 s45, s45, {STAMPS:#x}
        v_lshl_add_u32 v{T}, v0, 2, s45
        global_store_dword v{T}, v{VST}, {sr(pWS,2)}
        """)
    e("L_end:\ns_endpgm")
    for t in g.tail: e(t)
    e("L_code_end:")
    if o.stamps:
        z = [f"    s_mov_b32 s{sST+2*k}, 0" for k in range(1, g.maxst)]
        g.lines[3:3] = z
    return g

HEADER = open(f"cdna_kernels/{NAME}.s.ref").read().split("; Override launch geometry")[0]

def emit(o, path):
    g = build(o)
    errs = hazard.check(g.lines)
    for x in errs: print(x, file=sys.stderr)
    txt = HEADER
    txt += f"; @launch grid=(256,1,1) block=(512,1,1) lds={LDS_BYTES}\n"
    txt += f'.amdgcn_target "amdgcn-amd-amdhsa--gfx950"\n.text\n.globl {NAME}_kernel\n.p2align 12\n.type {NAME}_kernel,@function\n'
    txt += f".set CODE_BYTES, L_code_end - {NAME}_kernel\n"
    txt += "\n".join(g.lines) + "\n"
    txt += f'''.section .rodata,"a"
.p2align 6
.amdhsa_kernel {NAME}_kernel
  .amdhsa_next_free_vgpr {NVGPR}
  .amdhsa_next_free_sgpr {102 if (o.stamps or o.echo) else 56}
  .amdhsa_accum_offset {NVGPR}
  .amdhsa_group_segment_fixed_size 0
  .amdhsa_kernarg_size 88
  .amdhsa_user_sgpr_count 2
  .amdhsa_user_sgpr_kernarg_segment_ptr 1
  .amdhsa_system_sgpr_workgroup_id_x 1
  .amdhsa_float_denorm_mode_32 3
  .amdhsa_float_denorm_mode_16_64 3
.end_amdhsa_kernel
'''
    open(path, "w").write(txt)
    if o.stamps: open(path + ".names", "w").write("\n".join(" ".join(n) for n in g.allnames))
    return len(errs)

if __name__ == "__main__":
    ap = argparse.ArgumentParser()
    ap.add_argument("out")
    ap.add_argument("--stamps", action="store_true")
    ap.add_argument("--echo", default="")
    ap.add_argument("--echok", type=int, default=4)
    ap.add_argument("--outpol", default="")
    ap.add_argument("--ptpol", default="nt")
    ap.add_argument("--ptpos", type=int, default=0)
    ap.add_argument("--ptab", type=int, default=1)
    ap.add_argument("--tlbout", type=int, default=1)
    ap.add_argument("--s0", type=int, default=1)
    ap.add_argument("--s1", type=int, default=0)
    ap.add_argument("--lay", default="A")
    ap.add_argument("--ri", type=int, default=1)
    ap.add_argument("--rg", type=int, default=0)
    ap.add_argument("--s3", type=int, default=0)
    ap.add_argument("--gap", type=int, default=4)
    ap.add_argument("--k1", type=int, default=8)
    ap.add_argument("--w1cnt", type=int, default=0)
    ap.add_argument("--gate", type=int, default=8)
    ap.add_argument("--prog", default="wk0,v,v,wk1,v,p,wk2,v,wk5,q,b,v,v,wk7,v,v")
    ap.add_argument("--woa", type=int, default=8)
    ap.add_argument("--opos", type=int, default=1)
    o = ap.parse_args()
    sys.exit(1 if emit(o, o.out) else 0)
```

```python
import sys, struct, argparse
sys.path.insert(0, "gen")
import hazard

NAME = "parallel_sum__sliding_block_cached__dense_activation_silu__decode"
def f2u(x): return struct.unpack("<I", struct.pack("<f", x))[0]
LOG2E = f2u(1.4426950408889634); SCALE = f2u(128 ** -0.5); EPS = f2u(1e-5)

OREC, AREC, BREC, QREC, HREC = 0x0, 0x80000, 0xA0000, 0xC0000, 0xC4000
SDELTA = 0x10000
MLREC, QFLG, OFLG, AFLG, MARK, EPOCH = 0xE0000, 0xE2000, 0xE4000, 0xEC000, 0xEE000, 0xF8000
NREP = 16
STAMPS = 0x400000
L_RED, L_RH, L_ML, L_O, L_B, L_A = 0, 512, 1024, 2048, 2048, 4096
LDS_BYTES = 10240
SPIN_LIMIT = 0x40000

class G:
    def __init__(s, opt):
        s.o = opt; s.lines = []; s.vm = []; s.nst = 0; s.lab = 0; s.names = []; s.tail = []; s.allnames = []; s.maxst = 0
    def e(s, t):
        for ln in t.strip("\n").split("\n"):
            if not ln.strip(): continue
            s.lines.append("    " + ln.strip() if not ln.strip().endswith(":") else ln.strip())
    def c(s, t): s.lines.append("    ; " + t)
    def vmem(s, t, name):
        s.e(t); s.vm.append(name)
    def cnt(s, name):
        idx = max(k for k, n in enumerate(s.vm) if n == name)
        n = len(s.vm) - 1 - idx
        assert n < 64
        return n
    def wait(s, name, extra=""):
        s.e(f"s_waitcnt vmcnt({s.cnt(name)}) {extra}".strip())
    def stamp(s, label=""):
        if s.o.echo == label: s.e("s_memtime s[90:91]")
        if not s.o.stamps: return
        if s.o.fine and label in ("w2","bpub","mark","wgt","wo","h"): return
        k = s.nst; s.nst += 1; s.maxst = max(s.maxst, s.nst)
        s.e(f"s_memtime s[{sST+2*k}:{sST+2*k+1}]")
        s.names.append(label)
    def newrole(s, vm, nst):
        s.allnames.append(s.names); s.names = s.names[:nst]; s.nst = nst; s.vm = list(vm)
    def label(s, base):
        s.lab += 1; return f"L_{base}_{s.lab}"

def r(b, n=1): return f"v{b}" if n == 1 else f"v[{b}:{b+n-1}]"
def sr(b, n=1): return f"s{b}" if n == 1 else f"s[{b}:{b+n-1}]"

TID, VL, VL16, VTAG = 0, 1, 2, 3
T = 4
DUM, VTAGM, VW, VST = 20, 21, 22, 23
X8, XQ, XH, HG = 24, 28, 32, 34
WQ = 36
W1 = 68
AQ = 84
W2 = 36
WO = 52
WOP = 92
MLG, OG = 124, 140
vWQ, vW1, vW2o, vWOo, vPub, vHp, vRedW, vOG, vMLG, vL8, vT8, vHG, vPT, vAp, vMk, vAF, vWQ2, vW1b, vVpf, vVpf2 = range(156, 176)
K, V = 24, 88
TV0 = 208
S = 152
DA = 152
QG = 168
Q = 176
P8 = 184
OUT = 24
vKo, vVo, vOW, vQG, vOrd, vFr, vMLr, vMLw, vLw, vOF, vFin, vOut, vXres, vAFr, vMkA, vMLp = range(192, 208)
NVGPR = 240
pX, pK, pV, pWQ, pWO, pW1, pW2, pOUT, pWS = 4, 6, 8, 10, 12, 16, 18, 20, 24
sG, sJ, sW, sTAG, sLO, sHI = 26, 27, 28, 29, 30, 31
sR, sSPIN, sXRES = 22, 14, 15
S0 = 32
sSC, sL2 = 48, 50
sH = 52
sXCC, sCO, sCNT, sFOFF = 59, 3, 0, 1
pWS2, pWSX = 60, 62
sST = 64

def dpp(g, v, ctrl, op="add"):
    g.e(f"v_{op}_f32_dpp v{v}, v{v}, v{v} {ctrl} bank_mask:0xf")
def wave_sum_to_sgpr(g, v, sd):
    for c in ("row_ror:8 row_mask:0xf", "row_ror:4 row_mask:0xf", "row_ror:2 row_mask:0xf", "row_ror:1 row_mask:0xf",
              "row_bcast:15 row_mask:0xa", "row_bcast:31 row_mask:0xc"):
        g.e("s_nop 1"); dpp(g, v, c)
    g.e(f"s_nop 0\nv_readlane_b32 s{sd}, v{v}, 63\ns_nop 1")
def bf16r(g, d, s_):
    g.e(f"v_cvt_pk_bf16_f32 v{d}, v{s_}, v{s_}\nv_lshlrev_b32 v{d}, 16, v{d}")
def xor_reduce(g, v, t, op, bits):
    for b in bits:
        sw = "v_permlane32_swap_b32" if b == 5 else "v_permlane16_swap_b32"
        g.e(f"v_mov_b32 v{t}, v{v}\ns_nop 1\n{sw} v{v}, v{t}\nv_{op}_f32 v{v}, v{v}, v{t}")

def check_retry(g, name, loads, tags, first_wait):
    slow, ok = g.label(name + "s"), g.label(name + "k")
    g.e(first_wait)
    for t in tags: g.e(f"v_cmpx_eq_u32 vcc, v{VTAG}, v{t}")
    g.e(f"s_andn2_b64 s[{sR}:{sR+1}], -1, exec\ns_cbranch_scc1 {slow}\n{ok}:")
    t_ = [f"{slow}:\ns_sub_u32 s{sSPIN}, s{sSPIN}, 1\ns_cbranch_scc1 L_end\ns_mov_b64 exec, s[{sR}:{sR+1}]"] + loads + ["s_waitcnt vmcnt(0)"]
    t_ += [f"v_cmpx_eq_u32 vcc, v{VTAG}, v{t}" for t in tags]
    t_.append(f"s_andn2_b64 s[{sR}:{sR+1}], s[{sR}:{sR+1}], exec\ns_cbranch_scc1 {slow}\ns_mov_b64 exec, -1\ns_branch {ok}")
    g.tail += t_

def check_retry_fs(g, name, loads, tags, first_wait):
    slow, lp, ok = g.label(name + "s"), g.label(name + "l"), g.label(name + "k")
    g.e(first_wait)
    for t in tags: g.e(f"v_cmpx_eq_u32 vcc, v{VTAGM}, v{t}")
    g.e(f"s_andn2_b64 s[{sR}:{sR+1}], -1, exec\ns_cbranch_scc1 {slow}\n{ok}:")
    t_ = [f"{slow}:\ns_mov_b32 s{sCNT}, 0\n{lp}:",
          f"s_sub_u32 s{sSPIN}, s{sSPIN}, 1\ns_cbranch_scc1 L_end",
          f"s_add_u32 s{sCNT}, s{sCNT}, 1\ns_and_b32 s{pWSX}, s{sCNT}, 3\ns_cmp_eq_u32 s{pWSX}, 3",
          f"s_cselect_b32 s{pWSX}, s{pWS2}, s{pWS}\ns_cselect_b32 s{pWSX+1}, s{pWS2+1}, s{pWS+1}",
          f"s_mov_b64 exec, s[{sR}:{sR+1}]"]
    t_ += [l.replace(sr(pWS,2), sr(pWSX,2)) for l in loads]
    t_.append("s_waitcnt vmcnt(0)")
    for t in tags: t_.append(f"v_xor_b32 v{T}, v{VTAG}, v{t}\nv_cmpx_gt_u32 vcc, 16, v{T}")
    t_.append(f"s_mov_b64 s[56:57], exec")
    for t in tags: t_.append(f"v_cmpx_eq_u32 vcc, v{VTAGM}, v{t}")
    t_.append(f"s_cmp_eq_u64 s[56:57], exec\ns_cselect_b32 s{sCO}, s{sCO}, 0")
    t_.append(f"s_andn2_b64 s[{sR}:{sR+1}], s[{sR}:{sR+1}], s[56:57]\ns_cbranch_scc1 {lp}\ns_mov_b64 exec, -1\ns_branch {ok}")
    g.tail += t_

def fs_store(g, texts, name):
    sl, bk = g.label("st"), g.label("stb")
    g.e(f"s_cmp_eq_u32 s{sCO}, 0\ns_cbranch_scc1 {sl}")
    for t, st in texts:
        if st: g.vmem(t, name)
        else: g.e(t)
    g.e(f"{bk}:")
    g.tail.append(f"{sl}:\n" + "\n".join(t + (" sc1" if st else "") for t, st in texts) + f"\ns_branch {bk}")

def flag_wait(g, name, vt, sdst):
    lp, ok = g.label(name), g.label(name + "k")
    g.e(f"s_mov_b32 s{sCNT}, {NREP}\n{lp}:\ns_load_dwordx16 {sr(sdst,16)}, {sr(pWS,2)}, s{sFOFF}\ns_mov_b64 exec, -1\ns_add_u32 s{sFOFF}, s{sFOFF}, 64\ns_sub_u32 s{sCNT}, s{sCNT}, 1\ns_cmp_eq_u32 s{sCNT}, 0\ns_waitcnt lgkmcnt(0)\ns_cbranch_scc1 {ok}")
    for k in range(16): g.e(f"v_cmpx_eq_u32 vcc, s{sdst+k}, v{vt}")
    g.e(f"s_cbranch_execz {lp}\n{ok}:")
    if g.o.stamps: g.e(f"s_mov_b32 s97, s{sCNT}")

def vec_wait(g, name, addr, limit):
    lp, ok = g.label(name), g.label(name + "k")
    g.e(f"""
    s_mov_b32 s{sCNT}, {limit}
    {lp}:
    global_load_dword v{DUM}, v{addr}, {sr(pWS,2)} sc1
    s_sub_u32 s{sCNT}, s{sCNT}, 1
    s_cbranch_scc1 {ok}
    s_waitcnt vmcnt(0)
    v_cmp_ne_u32 vcc, v{VTAG}, v{DUM}
    s_cbranch_vccnz {lp}
    {ok}:
    """)
    g.vm = ["x"] * 0

def tagcalc(g):
    g.e(f"""
    s_mul_i32 s{sTAG}, s{sTAG}, 0x9E3779B1
    s_add_u32 s{sTAG}, s{sTAG}, 0x7F4A7C15
    s_xor_b32 s{sXCC}, s{sXCC}, s{sTAG}
    v_mov_b32 v{VTAG}, s{sTAG}
    v_mov_b32 v{VTAGM}, s{sXCC}
    """)

def sum4(g, addr, base, stride512):
    b = base // 512
    g.e(f"""
    ds_read2st64_b64 {r(T,4)}, v{addr} offset0:{b} offset1:{b+stride512}
    ds_read2st64_b64 {r(T+4,4)}, v{addr} offset0:{b+2*stride512} offset1:{b+3*stride512}
    s_waitcnt lgkmcnt(0)
    v_pk_add_f32 {r(T,2)}, {r(T,2)}, {r(T+2,2)}
    v_pk_add_f32 {r(T+4,2)}, {r(T+4,2)}, {r(T+6,2)}
    v_add_f32 v{T+12}, v{T}, v{T+4}
    v_add_f32 v{T+14}, v{T+1}, v{T+5}
    """)

def build(o):
    g = G(o); e = g.e
    NT = "nt"
    e(f"{NAME}_kernel:")
    e("s_cmp_ge_u32 s2, 256\ns_cbranch_scc1 L_end")
    e("s_load_dwordx16 s[4:19], s[0:1], 0\ns_load_dwordx2 s[20:21], s[0:1], 64\ns_load_dwordx2 s[24:25], s[0:1], 80")
    if o.echo: e("s_memtime s[92:93]")
    if o.stamps:
        e(f"s_memrealtime s[100:101]"); g.stamp("start")
    e(f"v_lshrrev_b32 v{VW}, 6, v0\ns_getpc_b64 s[{sR}:{sR+1}]")
    e(f"""
    v_readfirstlane_b32 s{sW}, v{VW}
    v_and_b32 v{VL}, 63, v0
    s_and_b32 s{sG}, s2, 7
    s_bfe_u32 s{sJ}, s2, 0x40003
    v_lshlrev_b32 v{VL16}, 4, v{VL}
    s_getreg_b32 s{sXCC}, hwreg(HW_REG_XCC_ID)
    s_mov_b32 s{sLO}, 0x05040100
    s_mov_b32 s{sHI}, 0x07060302
    s_mov_b32 s{sSC}, {EPOCH:#x}
    v_and_b32 v{T+12}, 3, v0
    v_lshlrev_b32 v{T+12}, 4, v{T+12}
    s_and_b32 s{sXCC}, s{sXCC}, 15
    s_cmp_ge_u32 s2, 128
    s_cbranch_scc1 L_att
    """)
    vm0, nst0 = list(g.vm), g.nst
    e(f"""
    v_lshrrev_b32 v{T+10}, 2, v0
    s_and_b32 s37, s{sJ}, 1
    s_lshl_b32 s38, s37, 3
    v_lshl_add_u32 v{T+3}, v{T+10}, 4, s38
    v_xor_b32 v{T+6}, 8, v{T+3}
    s_lshl_b32 s37, s37, 15
    s_min_u32 s32, s{sJ}, 13
    s_lshr_b32 s33, s32, 1
    s_and_b32 s34, s32, 1
    s_lshl_b32 s35, s34, 9
    v_lshl_add_u32 v{T+4}, v{T+10}, 3, s35    ; x slice (h)
    s_lshl_b32 s35, s{sG}, 10
    s_lshl_b32 s36, s{sJ}, 6
    s_add_u32 s35, s35, s36
    s_add_u32 s35, s35, s37
    v_lshl_add_u32 v{vWQ}, v{T+10}, 16, s35
    v_add_u32 v{vWQ}, v{T+12}, v{vWQ}
    v_xor_b32 v{vWQ2}, 0x8000, v{vWQ}
    s_lshl_b32 s35, s{sG}, 11
    s_lshl_b32 s36, s{sJ}, 7
    s_add_u32 s35, s35, s36
    s_add_u32 s35, s35, {QREC:#x}
    v_lshl_add_u32 v{vPub}, v{VL}, 3, s35
    s_lshl_b32 s35, s{sG}, 10
    s_lshl_b32 s36, s{sJ}, 2
    s_add_u32 s35, s35, s36
    s_add_u32 s35, s35, {QFLG-16*64:#x}
    v_lshl_add_u32 v{T+5}, v{VL}, 6, s35
    v_cmp_lt_u32 vcc, 15, v{VL}
    s_lshl_b32 s35, s{sG}, 12
    s_lshl_b32 s36, s32, 8
    s_add_u32 s35, s35, s36
    s_add_u32 s35, s35, {HREC-32*16:#x}
    v_cndmask_b32 v{vPub}, v{vPub}, v{T+5}, vcc
    v_add_u32 v{T+5}, s35, v{VL16}
    v_cmp_lt_u32 vcc, 31, v{VL}
    s_nop 1
    v_cndmask_b32 v{vPub}, v{vPub}, v{T+5}, vcc
    s_waitcnt lgkmcnt(0)
    """)
    g.stamp("karg")
    g.vmem(f"global_load_dwordx4 {r(X8,4)}, v{VL16}, {sr(pX,2)}", "x")
    g.vmem(f"global_load_dwordx2 {r(XQ,2)}, v{T+3}, {sr(pX,2)}", "x")
    g.vmem(f"global_load_dwordx2 {r(XQ+2,2)}, v{T+6}, {sr(pX,2)}", "x")
    g.vmem(f"global_load_dwordx2 {r(XH,2)}, v{T+4}, {sr(pX,2)}", "x")
    if o.s0: e("s_barrier")
    def wqload(u0, u1):
        for u in range(u0, u1):
            va = vWQ if u < 4 else vWQ2
            g.vmem(f"global_load_dwordx4 {r(WQ+4*u,4)}, v{va}, {sr(pWQ,2)} {o.wqpol}", f"wq{u}")
            if u & 3 != 3: e(f"v_add_u32 v{va}, 0x2000, v{va}")
            if o.gapq: e(f"s_nop {o.gapq-1}")
    wqload(0, 4)
    e(f"s_load_dword s{sTAG}, {sr(pWS,2)}, s{sSC}")
    e("s_branch L_proj2")
    cut1 = len(g.lines)
    e("L_proj2:")
    e(f"""
    s_mov_b32 s{sSPIN}, {SPIN_LIMIT:#x}
    s_add_u32 s{pWS2}, s{pWS}, {SDELTA:#x}
    s_addc_u32 s{pWS2+1}, s{pWS+1}, 0
    s_mul_i32 s35, s34, {256*3584}
    s_mul_i32 s36, s{sG}, 448
    s_add_u32 s35, s35, s36
    s_lshl_b32 s36, s33, 6
    s_add_u32 s35, s35, s36
    v_mul_u32_u24 v{vW1}, {4*3584}, v{T+10}
    v_add3_u32 v{vW1}, v{vW1}, v{T+12}, s35
    s_lshr_b32 s37, s{sJ}, 2                  ; head in group / w2 row block
    s_and_b32 s38, s{sJ}, 3
    s_lshl_b32 s39, s{sG}, 2
    s_add_u32 s39, s39, s37                   ; p = 4g + (j>>2)
    s_lshl_b32 s40, s38, 8
    s_add_u32 s40, s40, 4096
    v_lshl_add_u32 v{T+3}, v{VL}, 2, s40
    s_mul_i32 s35, s39, {56*1024}
    v_mul_u32_u24 v{vW2o}, {14*1024}, v{VW}
    v_add3_u32 v{vW2o}, v{vW2o}, v{T+3}, s35
    s_lshl_b32 s35, s39, 17
    v_lshl_add_u32 v{vWOo}, v{VW}, 15, v{T+3}
    v_add_u32 v{vWOo}, s35, v{vWOo}
    s_lshl_b32 s35, s38, 15
    s_lshl_b32 s36, s39, 10
    s_add_u32 s35, s35, s36
    s_add_u32 s35, s35, {AREC:#x}
    s_add_u32 s36, s35, {BREC-AREC:#x}
    s_cmp_lt_u32 s{sW}, 2
    s_cselect_b32 s35, s35, s36
    v_add_u32 v{vAp}, s35, v{VL16}
    v_and_b32 v{T+4}, 127, v0
    v_lshl_add_u32 v{vPT}, v{T+4}, 3, s35
    v_and_b32 v{T+4}, 15, v0
    v_min_u32 v{T+4}, 13, v{T+4}
    s_mul_i32 s35, s37, 56
    s_mul_i32 s36, s{sW}, 14
    s_add_u32 s35, s35, s36
    v_add_u32 v{T+4}, s35, v{T+4}
    v_lshrrev_b32 v{T+5}, 5, v{T+4}
    v_and_b32 v{T+4}, 31, v{T+4}
    s_lshl_b32 s35, s{sG}, 12
    s_add_u32 s35, s35, {HREC:#x}
    v_lshl_add_u32 v{vHG}, v{T+5}, 9, s35
    v_lshl_add_u32 v{vHG}, v{T+4}, 3, v{vHG}
    v_bfe_u32 v{T+4}, v0, 4, 1
    v_lshl_add_u32 v{vHG}, v{T+4}, 8, v{vHG}
    v_lshlrev_b32 v{vRedW}, 1, v{T+12}
    v_lshl_add_u32 v{vRedW}, v{T+4}, 3, v{vRedW}
    v_bfe_u32 v{T+4}, v0, 5, 1
    v_lshl_add_u32 v{vRedW}, v{T+4}, 2, v{vRedW}
    v_lshl_add_u32 v{vRedW}, v{VW}, 7, v{vRedW}
    s_lshl_b32 s35, s39, 14
    v_lshl_add_u32 v{vOG}, v{VW}, 12, s35
    v_add_u32 v{vOG}, v{VL16}, v{vOG}
    s_lshl_b32 s35, s39, 8
    s_add_u32 s35, s35, {MLREC:#x}
    v_and_b32 v{T+4}, 48, v0
    v_add_u32 v{vMLG}, s35, v{T+4}
    v_lshlrev_b32 v{vL8}, 3, v{VL}
    v_lshlrev_b32 v{vT8}, 3, v0
    v_and_b32 v{T+4}, 15, v0
    v_lshlrev_b32 v{vHp}, 3, v{T+4}
    s_and_b32 s35, s2, 127
    s_lshl_b32 s35, s35, 7
    s_add_u32 s35, s35, {MARK:#x}
    v_mov_b32 v{vMk}, s35
    s_lshl_b32 s35, s{sG}, 7
    s_lshl_b32 s36, s{sJ}, 2
    s_add_u32 s35, s35, s36
    s_add_u32 s35, s35, {AFLG:#x}
    v_mov_b32 v{vAF}, s35
    s_mov_b32 s{sL2}, {LOG2E:#x}
    s_lshl_b32 s35, s{sG}, 24
    s_lshl_b32 s36, s{sJ}, 16
    s_add_u32 s35, s35, s36
    s_add_u32 s35, s35, 0xF00000
    s_add_u32 s36, s{sJ}, 8
    s_lshl_b32 s36, s36, 10
    v_lshl_add_u32 v{vVpf}, v{VL}, 7, s36
    v_and_b32 v{vVpf}, 0x3fff, v{vVpf}
    v_lshl_add_u32 v{T+4}, v{VW}, 14, s35
    v_xor_b32 v{vVpf2}, 0x2000, v{vVpf}
    v_add_u32 v{vVpf}, v{T+4}, v{vVpf}
    v_add_u32 v{vVpf2}, v{T+4}, v{vVpf2}
    """)
    def vpf():
        g.c("pull the tail of the partner workgroup's V into this die's L2")
        if o.vpf > 8:
            n = o.vpf - 8
            m = ((1 << (8*n)) - 1) << (64 - 8*n)
            e(f"s_mov_b32 exec_lo, {m & 0xffffffff:#x}\ns_mov_b32 exec_hi, {m >> 32:#x}")
            g.vmem(f"global_load_dword v{DUM}, v{vVpf2}, {sr(pV,2)} {NT}", "vpf")
            e("s_mov_b64 exec, -1")
        if 0 < o.vpf < 8:
            m = ((1 << (8*o.vpf)) - 1) << (64 - 8*o.vpf)
            e(f"s_mov_b32 exec_lo, {m & 0xffffffff:#x}\ns_mov_b32 exec_hi, {m >> 32:#x}")
        if o.vpf:
            g.vmem(f"global_load_dword v{DUM}, v{vVpf}, {sr(pV,2)} {NT}", "vpf")
            e("s_mov_b64 exec, -1")
    def w1load():
        e(f"v_add_u32 v{vW1b}, 7168, v{vW1}")
        for u in range(4):
            g.vmem(f"global_load_dwordx4 {r(W1+4*u,4)}, v{vW1 if u < 2 else vW1b}, {sr(pW1,2)} offset:{3584*(u&1)} {NT}", f"w1{u}")
            if o.gapq: e(f"s_nop {o.gapq}")
    def second():
        if o.qb4: e("s_barrier")
        wqload(4, 8)
        if o.w1pos == 0: e("s_barrier"); w1load()
    if o.q2pos == 0: second()
    g.c("layernorm")
    if o.fine: g.stamp("prex")
    g.wait("x")
    if o.fine: g.stamp("x")
    if o.q2pos == 1: second()
    U = T
    for d in range(4):
        e(f"v_lshlrev_b32 v{U+2*d}, 16, v{X8+d}\nv_and_b32 v{U+2*d+1}, 0xffff0000, v{X8+d}")
    e(f"""
    v_pk_add_f32 {r(T+8,2)}, {r(U,2)}, {r(U+2,2)}
    v_pk_add_f32 {r(T+10,2)}, {r(U+4,2)}, {r(U+6,2)}
    v_pk_add_f32 {r(T+8,2)}, {r(T+8,2)}, {r(T+10,2)}
    v_add_f32 v{T+8}, v{T+8}, v{T+9}
    """)
    wave_sum_to_sgpr(g, T+8, 44)
    e(f"v_mov_b32 v{T+12}, 0x3b000000\nv_mul_f32 v{T+10}, s44, v{T+12}")
    for d in range(4):
        e(f"v_pk_add_f32 {r(U+2*d,2)}, {r(U+2*d,2)}, {r(T+10,2)} op_sel_hi:[1,0] neg_lo:[0,1] neg_hi:[0,1]")
    e(f"v_pk_mul_f32 {r(T+8,2)}, {r(U,2)}, {r(U,2)}")
    for d in range(1, 4):
        e(f"v_pk_fma_f32 {r(T+8,2)}, {r(U+2*d,2)}, {r(U+2*d,2)}, {r(T+8,2)}")
    e(f"v_add_f32 v{T+8}, v{T+8}, v{T+9}")
    wave_sum_to_sgpr(g, T+8, 44)
    e(f"v_mul_f32 v{T+11}, s44, v{T+12}")
    bf16r(g, T+10, T+10)
    bf16r(g, T+11, T+11)
    e(f"v_add_f32 v{T+11}, {EPS:#x}, v{T+11}")
    bf16r(g, T+11, T+11)
    e(f"v_sqrt_f32 v{T+11}, v{T+11}\ns_nop 0")
    bf16r(g, T+11, T+11)
    e(f"v_rcp_f32 v{T+12}, v{T+11}")
    for k, x in enumerate((XQ, XQ+1, XQ+2, XQ+3, XH, XH+1)):
        a = U + 2*(k % 4)
        e(f"""
        v_lshlrev_b32 v{a}, 16, v{x}
        v_and_b32 v{a+1}, 0xffff0000, v{x}
        v_pk_add_f32 {r(a,2)}, {r(a,2)}, {r(T+10,2)} op_sel_hi:[1,0] neg_lo:[0,1] neg_hi:[0,1]
        v_cvt_pk_bf16_f32 v{x}, v{a}, v{a+1}
        v_lshlrev_b32 v{a}, 16, v{x}
        v_and_b32 v{a+1}, 0xffff0000, v{x}
        v_pk_mul_f32 {r(a,2)}, {r(a,2)}, {r(T+12,2)} op_sel_hi:[1,0]
        v_cvt_pk_bf16_f32 v{x}, v{a}, v{a+1}
        """)
    e("s_waitcnt lgkmcnt(0)")
    tagcalc(g)
    e(f"v_mov_b32 v{T+13}, s{sXCC}\nv_mov_b32 v{T+15}, s{sXCC}")
    g.stamp("ln")
    if o.q2pos == 2: second()
    def gemv_rows(W, X, npair, wname):
        for pr in range(npair):
            if wname: g.wait(f"{wname}{2*pr+1}")
            if wname == "wq" and o.fine: g.stamp(f"wq{2*pr+1}")
            for d in range(4):
                a, b = W + 8*pr + d, W + 8*pr + 4 + d
                e(f"v_perm_b32 v{T+2*d}, v{b}, v{a}, s{sLO}\nv_perm_b32 v{T+2*d+1}, v{b}, v{a}, s{sHI}")
            for k in range(8):
                e(f"v_dot2_f32_bf16 v{AQ+k}, v{T+k}, v{X+pr}, {'0' if pr == 0 else 'v%d' % (AQ+k)}")
    def col_reduce(base, who):
        A = AQ
        for k in range(0, 8, 2): e(f"v_permlane32_swap_b32 v{A+k}, v{A+k+1}")
        for k in range(0, 8, 2): e(f"v_add_f32 v{A+k}, v{A+k}, v{A+k+1}")
        e(f"v_permlane16_swap_b32 v{A}, v{A+2}\ns_nop 0\nv_permlane16_swap_b32 v{A+4}, v{A+6}")
        e(f"v_add_f32 v{A}, v{A}, v{A+2}\nv_add_f32 v{A+4}, v{A+4}, v{A+6}")
        for c in (8, 4):
            e("s_nop 0")
            for v in (A, A+4): dpp(g, v, f"row_ror:{c} row_mask:0xf")
        e(f"""
        s_mov_b32 exec_lo, 0x000f000f
        s_mov_b32 exec_hi, 0x000f000f
        ds_write2_b32 v{vRedW}, v{A}, v{A+4} offset0:{base//4} offset1:{base//4+4}
        s_mov_b64 exec, -1
        s_cmp_lg_u32 s{sW}, {who}
        s_waitcnt lgkmcnt(0)
        s_barrier
        """)
    def col_sum(base):
        b = base // 8
        e(f"""
        ds_read2_b64 {r(T,4)}, v{vHp} offset0:{b} offset1:{b+16}
        ds_read2_b64 {r(T+4,4)}, v{vHp} offset0:{b+32} offset1:{b+48}
        s_waitcnt lgkmcnt(0)
        v_pk_add_f32 {r(T,2)}, {r(T,2)}, {r(T+2,2)}
        v_pk_add_f32 {r(T+4,2)}, {r(T+4,2)}, {r(T+6,2)}
        v_add_f32 v{T+12}, v{T}, v{T+4}
        v_add_f32 v{T+14}, v{T+1}, v{T+5}
        """)
    g.c("q slice: 32 columns x 512 rows; h partial: 32 columns x 256 rows")
    gemv_rows(WQ, XQ, 4, "wq")
    g.stamp("wq")
    col_reduce(L_RED, 0)
    e("s_cbranch_scc1 L_noq")
    col_sum(L_RED)
    e(f"""
    v_cvt_pk_bf16_f32 v{T+12}, v{T+12}, v{T+14}
    s_mov_b64 exec, 0xffff
    global_store_dwordx2 v{vPub}, {r(T+12,2)}, {sr(pWS,2)}
    s_mov_b32 exec_lo, 0xffff0000
    global_store_dword v{vPub}, v{T+13}, {sr(pWS,2)}
    s_mov_b32 exec_lo, 0xffff
    global_store_dwordx2 v{vPub}, {r(T+12,2)}, {sr(pWS2,2)} sc1
    s_mov_b64 exec, -1
    """)
    g.stamp("qpub")
    if o.w1pos == 0:
        e("s_waitcnt vmcnt(3)\ns_branch L_w1ok\nL_noq:\ns_waitcnt vmcnt(0)\nL_w1ok:")
        gemv_rows(W1, XH, 2, None)
    else:
        e("L_noq:\ns_barrier")
        if o.vpfpos == 0: vpf()
        w1load()
        if o.vpfpos == 1: vpf()
        gemv_rows(W1, XH, 2, "w1")
    col_reduce(L_RH, 1)
    e("s_cbranch_scc1 L_noh")
    col_sum(L_RH)
    e(f"""
    s_mov_b32 exec_lo, 0
    s_mov_b32 exec_hi, 0xffff
    global_store_dwordx4 v{vPub}, {r(T+12,4)}, {sr(pWS,2)}
    global_store_dwordx4 v{vPub}, {r(T+12,4)}, {sr(pWS2,2)} sc1
    s_mov_b64 exec, -1
    """)
    g.stamp("hpub")
    e("L_noh:\ns_barrier")
    g.vm = []
    def w2load():
        e(f"v_add_u32 v{T+1}, 0x2000, v{vW2o}")
        for n in range(14):
            g.vmem(f"global_load_dword v{W2+n}, v{vW2o if n < 8 else T+1}, {sr(pW2,2)} offset:{(n&7)*1024-4096} {NT}", "w2")
    def woload():
        for n in range(32):
            if n and n % 8 == 0: e(f"v_add_u32 v{vWOo}, 0x2000, v{vWOo}")
            g.vmem(f"global_load_dword v{WO+n}, v{vWOo}, {sr(pWO,2)} offset:{(n & 7)*1024-4096} {NT}", f"wo{n}")
    if o.vpfpos == 2: vpf()
    if o.bmode == "early": w2load()
    if o.ptab:
        g.vmem(f"global_load_dword v{DUM}, v{vPT}, {sr(pWS,2)}", "pt")
    g.vmem(f"global_load_dword v{DUM}, v{vAF}, {sr(pWS,2)} {o.ptpol}", "pt")
    if o.mark >= 0: g.vmem(f"global_load_dword v{DUM}, v{vMk}, {sr(pWS,2)} sc1", "pt")
    h_loads = [f"global_load_dwordx2 {r(HG,2)}, v{vHG}, {sr(pWS,2)} sc1"]
    if o.bmode == "all":
        e("s_barrier")
        w2load()
        g.vmem(h_loads[0], "hg")
        woload()
        g.stamp("wiss")
        check_retry_fs(g, "h", h_loads, [HG+1], f"s_waitcnt vmcnt({g.cnt('hg')})")
    else:
        e("s_waitcnt vmcnt(%d)" % o.hwait)
        e(h_loads[0])
        check_retry_fs(g, "h", h_loads, [HG+1], "s_waitcnt vmcnt(0)")
    e(f"v_mov_b32 v{T+13}, s{sTAG}\nv_mov_b32 v{T+15}, s{sTAG}")
    xor_reduce(g, HG, T, "add", (4,))
    bf16r(g, HG, HG)
    e(f"""
    v_mul_f32 v{T}, {LOG2E | 0x80000000:#x}, v{HG}
    v_exp_f32 v{T}, v{T}
    s_nop 0
    v_add_f32 v{T}, 1.0, v{T}
    v_rcp_f32 v{T}, v{T}
    s_nop 0
    v_mul_f32 v{HG}, v{HG}, v{T}
    s_nop 1
    v_mov_b32_dpp v{T}, v{HG} quad_perm:[1,0,3,2] row_mask:0xf bank_mask:0xf
    v_cvt_pk_bf16_f32 v{HG}, v{HG}, v{T}
    s_nop 0
    """)
    for n in range(7): e(f"v_readlane_b32 s{sH+n}, v{HG}, {2*n}")
    g.stamp("h")
    def markwait():
        g.c("start the remaining weight loads once the partner attention workgroup is far enough into V")
        if o.mark >= 0: vec_wait(g, "mk", vMk, 64)
        g.vm = []
        g.stamp("mark")
    def ffn2():
        g.wait("w2")
        g.stamp("w2")
        for n in range(7):
            e(f"v_perm_b32 v{WOP+2*n}, v{W2+2*n+1}, v{W2+2*n}, s{sLO}\nv_perm_b32 v{WOP+2*n+1}, v{W2+2*n+1}, v{W2+2*n}, s{sHI}")
        for n in range(7):
            for c in range(2):
                e(f"v_dot2_f32_bf16 v{T+10+c}, v{WOP+2*n+c}, s{sH+n}, {'0' if n == 0 else 'v%d' % (T+10+c)}")
        e(f"s_cmp_lg_u32 s{sW}, 2\ns_nop 1\nds_write_b64 v{vT8}, {r(T+10,2)} offset:{L_B}")
    if o.bmode == "early":
        ffn2()
        e("s_waitcnt lgkmcnt(0)\ns_barrier\ns_cbranch_scc1 L_nob")
        sum4(g, vL8, L_B, 1)
        e(f"global_store_dwordx4 v{vAp}, {r(T+12,4)}, {sr(pWS,2)} sc1\nL_nob:")
        g.stamp("bpub")
        markwait(); woload()
    else:
        if o.bmode == "late": markwait(); w2load(); woload()
        ffn2()
        e(f"s_cselect_b32 s{sCNT}, {L_A-L_B}, 0\nv_add_u32 v{vL8}, s{sCNT}, v{vL8}")
    def woperm(a, b):
        for n in range(a, b):
            e(f"v_perm_b32 v{WOP+2*n}, v{WO+2*n+1}, v{WO+2*n}, s{sLO}\nv_perm_b32 v{WOP+2*n+1}, v{WO+2*n+1}, v{WO+2*n}, s{sHI}")
    ml_loads = [f"global_load_dwordx4 {r(MLG+4*u,4)}, v{vMLG}, {sr(pWS,2)} offset:{64*u} sc1" for u in range(4)]
    o_loads = [f"global_load_dwordx4 {r(OG+4*u,4)}, v{vOG}, {sr(pWS,2)} offset:{1024*u} sc1" for u in range(4)]
    for q in range(4):
        g.wait(f"wo{8*q+7}")
        if q == o.oq:
            for ld in ml_loads: g.vmem(ld, "ml")
            for ld in o_loads: g.vmem(ld, "o")
        woperm(4*q, 4*q+4)
    g.stamp("wo")
    check_retry(g, "ml", ml_loads, [MLG+4*u+k for u in range(4) for k in (1, 3)], f"s_waitcnt vmcnt({g.cnt('ml')})")
    g.stamp("ml")
    M_, L_ = T, T+1
    e(f"""
    v_max3_f32 v{M_}, v{MLG}, v{MLG+4}, v{MLG+8}
    v_max_f32 v{M_}, v{M_}, v{MLG+12}
    """)
    xor_reduce(g, M_, T+2, "max", (5, 4))
    for u in range(4): e(f"v_sub_f32 v{MLG+4*u}, v{MLG+4*u}, v{M_}")
    for u in range(4): e(f"v_mul_f32 v{MLG+4*u}, s{sL2}, v{MLG+4*u}")
    for u in range(4): e(f"v_exp_f32 v{MLG+4*u}, v{MLG+4*u}")
    e(f"v_mul_f32 v{L_}, v{MLG}, v{MLG+2}")
    for u in range(1, 4): e(f"v_fmac_f32 v{L_}, v{MLG+4*u}, v{MLG+4*u+2}")
    xor_reduce(g, L_, T+2, "add", (5, 4))
    e(f"v_rcp_f32 v{L_}, v{L_}")
    g.stamp("wgt")
    check_retry(g, "o", o_loads, [OG+4*u+k for u in range(4) for k in (1, 3)], "s_waitcnt vmcnt(0)")
    g.stamp("ogot")
    a0, a1 = T+2, T+3
    e(f"v_mul_f32 v{a0}, v{MLG}, v{OG}\nv_mul_f32 v{a1}, v{MLG}, v{OG+2}")
    for u in range(1, 4): e(f"v_fmac_f32 v{a0}, v{MLG+4*u}, v{OG+4*u}\nv_fmac_f32 v{a1}, v{MLG+4*u}, v{OG+4*u+2}")
    e(f"""
    s_nop 1
    v_permlane32_swap_b32 v{a0}, v{a1}
    v_add_f32 v{a0}, v{a0}, v{a1}
    v_mov_b32 v{a1}, v{a0}
    s_nop 1
    v_permlane16_swap_b32 v{a0}, v{a1}
    v_add_f32 v{a0}, v{a0}, v{a1}
    v_mul_f32 v{a0}, v{a0}, v{L_}
    v_mul_f32 v{a1}, 1.0, v{a0}
    s_nop 1
    v_permlane32_swap_b32 v{a0}, v{a1}
    v_cvt_pk_bf16_f32 v{a0}, v{a0}, v{a1}
    s_nop 0
    """)
    for n in range(3): e(f"v_readlane_b32 s{S0+n}, v{a0}, {n}")
    for n in range(16):
        if n + 3 < 16: e(f"v_readlane_b32 s{S0+n+3}, v{a0}, {n+3}")
        for c in range(2):
            e(f"v_dot2_f32_bf16 v{T+8+c}, v{WOP+2*n+c}, s{S0+n}, {'0' if n == 0 else 'v%d' % (T+8+c)}")
    e(f"""
    {f"s_cmp_lg_u32 s{sW}, 0" if o.bmode == "early" else f"s_bitcmp1_b32 s{sW}, 0"}
    s_nop 1
    ds_write_b64 v{vT8}, {r(T+8,2)} offset:{L_A}
    s_waitcnt lgkmcnt(0)
    s_barrier
    s_cbranch_scc1 L_out
    """)
    sum4(g, vL8, L_A if o.bmode == "early" else L_B, 1)
    e(f"global_store_dwordx4 v{vAp}, {r(T+12,4)}, {sr(pWS,2)} sc1\ns_mov_b64 exec, 1\nglobal_store_dword v{vAF}, v{VTAG}, {sr(pWS,2)}")
    g.stamp("apub")
    if o.echop:
        e(f"""
        s_cmp_lg_u32 s2, {o.echowg}
        s_cbranch_scc1 L_out
        s_cmp_lg_u32 s{sW}, 0
        s_cbranch_scc1 L_out
        s_memtime s[94:95]
        s_waitcnt lgkmcnt(0)
        s_sub_u32 s90, s90, s92
        s_mul_i32 s90, s90, {o.echok}
        L_echop:
        s_memtime s[96:97]
        s_waitcnt lgkmcnt(0)
        s_sub_u32 s96, s96, s94
        s_cmp_lt_u32 s96, s90
        s_cbranch_scc1 L_echop
        """)
    e("s_branch L_out" if o.stamps else "s_endpgm")
    g.newrole(vm0, nst0)
    cut2 = len(g.lines)
    e("L_att:")
    g.c("prefetch this kernel's code into L2")
    e(f"v_lshlrev_b32 v{T}, 7, v0\nv_cmp_gt_u32 vcc, CODE_BYTES-128, v{T}\ns_and_b64 exec, exec, vcc\ns_cbranch_execz L_nocp\nglobal_load_dword v{DUM}, v{T}, s[{sR}:{sR+1}]\nL_nocp:\ns_mov_b64 exec, -1")
    e(f"""
    s_lshl_b32 s41, s{sG}, 24
    s_lshl_b32 s42, s{sJ}, 16
    s_add_u32 s41, s41, s42
    s_add_u32 s41, s41, 0xF00000
    v_lshl_add_u32 v{vVo}, v{VW}, 14, s41
    v_bfe_u32 v{T+13}, v0, 2, 2
    v_lshl_add_u32 v{T+14}, v{T+13}, 8, v{T+12}
    v_bfe_u32 v{T+15}, v0, 4, 2
    v_lshl_add_u32 v{T+14}, v{T+15}, 6, v{T+14}
    v_add_u32 v{vKo}, v{T+14}, v{vVo}
    v_add_u32 v{vVo}, v{VL16}, v{vVo}
    s_lshl_b32 s{S0}, s{sJ}, 10
    """)
    g.c("each workgroup walks its 16 load slots in a rotated order (spreads the memory channels)")
    for n in range(1, 16):
        e(f"s_add_u32 s{S0+n}, s{S0+n-1}, 1024\ns_and_b32 s{S0+n}, s{S0+n}, 0x3fff")
    e(f"""
    s_lshl_b32 s{sL2}, s{sG}, 7
    s_lshl_b32 s{sL2+1}, s{sJ}, 3
    s_add_u32 s{sL2}, s{sL2}, s{sL2+1}
    s_and_b32 s{sL2+1}, s{sW}, 1
    s_lshl2_add_u32 s{sL2}, s{sL2+1}, s{sL2}
    v_lshrrev_b32 v{T+2}, 3, v0
    v_and_b32 v{T+3}, 7, v0
    v_min_u32 v{T+3}, 6, v{T+3}
    s_mul_i32 s52, s{sJ}, {32*3584}
    s_mul_i32 s53, s{sG}, 448
    s_add_u32 s52, s52, s53
    v_mul_u32_u24 v{T+2}, 3584, v{T+2}
    v_lshl_add_u32 v{T+3}, v{T+3}, 6, s52
    v_add_u32 v{T+2}, v{T+2}, v{T+3}
    s_lshl_b32 s52, s{sG}, 11
    s_lshl_b32 s53, s{sJ}, 7
    s_add_u32 s52, s52, s53
    s_add_u32 s52, s52, {QREC:#x}
    s_lshl_b32 s54, s{sG}, 10
    s_lshr_b32 s53, s53, 1
    s_add_u32 s53, s53, s54
    s_add_u32 s53, s53, {QFLG:#x}
    s_lshl_b32 s54, s{sG}, 12
    s_lshl_b32 s55, s{sJ}, 8
    s_add_u32 s54, s54, s55
    s_add_u32 s54, s54, {HREC:#x}
    s_add_u32 s55, s54, 128
    s_cmp_eq_u32 s{sW}, 1
    s_cselect_b32 s52, s53, s52
    s_cmp_eq_u32 s{sW}, 2
    s_cselect_b32 s52, s54, s52
    s_cmp_eq_u32 s{sW}, 3
    s_cselect_b32 s52, s55, s52
    v_mov_b32 v{T+3}, s52
    s_waitcnt lgkmcnt(0)
    """)
    g.c("bring the partner's q / hint / h lines into this die's L2 ahead of its stores")
    g.vmem(f"global_load_dword v{DUM}, v{T+3}, {sr(pWS,2)} {o.ptpol}", "pt")
    e(f"v_mov_b32 v{vOF}, v{T+2}")
    def w1pf():
        g.c("pull this die's share of w1 into L2 ahead of the key stream")
        g.vmem(f"global_load_dword v{DUM}, v{vOF}, {sr(pW1,2)} {NT}", "pf")
    if o.w1pf == 1: w1pf()
    def kload(n):
        e(f"v_add_u32 v{T+n%2}, s{S0+n}, v{vKo}")
        g.vmem(f"global_load_dwordx4 {r(K+4*n,4)}, v{T+n%2}, {sr(pK,2)} {NT}", f"k{n}")
        if o.gap > 1: e(f"s_nop {o.gap-2}")
    def vload(n):
        e(f"v_add_u32 v{T+n%2}, s{S0+n}, v{vVo}")
        g.vmem(f"global_load_dwordx4 {r(V+4*n,4)}, v{T+n%2}, {sr(pV,2)} {NT}", f"v{n}")
        if o.gap > 1: e(f"s_nop {o.gap-2}")
    for n in range(o.k0): kload(n)
    e(f"""
    s_load_dword s{sTAG}, {sr(pWS,2)}, s{sSC}
    s_load_dword s{sXRES}, {sr(pX,2)}, s{sL2}
    s_mov_b32 s{sSPIN}, {SPIN_LIMIT:#x}
    s_mov_b32 s{sCO}, 1
    s_add_u32 s{pWS2}, s{pWS}, {SDELTA:#x}
    s_addc_u32 s{pWS2+1}, s{pWS+1}, 0
    s_lshl_b32 s52, s{sG}, 11
    s_add_u32 s52, s52, {QREC:#x}
    v_lshl_add_u32 v{vQG}, v{T+14}, 1, s52
    s_lshl_b32 s52, s{sG}, 16
    s_lshl_b32 s53, s{sJ}, 8
    s_add_u32 s52, s52, s53
    v_lshrrev_b32 v{T+2}, 4, v0
    v_and_b32 v{T+3}, 15, v0
    v_lshl_add_u32 v{vOW}, v{T+2}, 12, s52
    v_lshl_add_u32 v{vOW}, v{T+3}, 4, v{vOW}
    v_lshrrev_b32 v{T+2}, 2, v0
    v_lshlrev_b32 v{vOrd}, 4, v{T+2}
    v_bfe_u32 v{T+4}, v0, 1, 1
    v_lshl_add_u32 v{vOrd}, v{T+4}, 10, v{vOrd}
    v_and_b32 v{T+4}, 1, v0
    v_lshl_add_u32 v{vOrd}, v{T+4}, 3, v{vOrd}
    s_lshl_b32 s52, s{sG}, 2
    s_add_u32 s52, s52, s{sW}                 ; head
    s_lshl_b32 s53, s52, 8
    s_lshl_b32 s54, s{sJ}, 4
    s_add_u32 s53, s53, s54
    s_add_u32 s53, s53, {MLREC:#x}
    v_mov_b32 v{vMLp}, s53
    v_lshlrev_b32 v{vMLw}, 5, v{T+13}
    v_lshl_add_u32 v{vMLw}, v{VW}, 3, v{vMLw}
    v_lshlrev_b32 v{vMLr}, 5, v{T+15}
    v_lshl_add_u32 v{vFr}, v{VW}, 3, v{vMLr}
    v_lshl_add_u32 v{vLw}, v{VW}, 11, v{VL16}
    s_and_b32 s53, s2, 127
    s_lshl_b32 s53, s53, 7
    s_add_u32 s53, s53, {MARK:#x}
    v_mov_b32 v{vMkA}, s53
    s_lshl_b32 s53, s{sG}, 7
    s_add_u32 s53, s53, {AFLG:#x}
    v_lshl_add_u32 v{vAFr}, v{T+3}, 2, s53
    s_lshr_b32 s53, s{sL2}, 8
    s_lshl_b32 s53, s53, 15
    s_and_b32 s54, s{sL2}, 255
    s_lshl_b32 s54, s54, 2
    s_add_u32 s53, s53, s54
    s_add_u32 s53, s53, {AREC:#x}
    v_and_b32 v{T+4}, 31, v0
    v_lshl_add_u32 v{vFin}, v{T+4}, 10, s53
    v_bfe_u32 v{T+4}, v0, 5, 1
    v_lshl_add_u32 v{vFin}, v{T+4}, 17, v{vFin}
    v_bfe_u32 v{T+4}, v0, 4, 1
    v_lshl_add_u32 v{vOut}, v{T+4}, 1, s{sL2}
    v_cmp_eq_u32 vcc, 0, v{T+4}
    s_lshl_b32 s{sFOFF}, s{sG}, 10
    s_add_u32 s{sFOFF}, s{sFOFF}, {QFLG:#x}
    s_lshl_b32 s55, s{sW}, 4
    """)
    if not o.adelay:
        for n in range(o.k0, 16): kload(n)
    e(f"""
    s_waitcnt lgkmcnt(0)
    s_lshl_b32 s52, s{sXRES}, 16
    s_and_b32 s53, s{sXRES}, 0xffff0000
    v_mov_b32 v{T+2}, s52
    v_mov_b32 v{T+3}, s53
    v_cndmask_b32 v{vXres}, v{T+3}, v{T+2}, vcc
    s_mov_b32 s{sSC}, {SCALE:#x}
    s_mov_b32 s{sSC+1}, {SCALE:#x}
    s_mov_b32 s{sL2}, {LOG2E:#x}
    s_mov_b32 s{sL2+1}, {LOG2E:#x}
    """)
    if o.adelay:
        g.stamp("ep")
        if o.w1pf == 2: w1pf()
        for n in range(o.k0, 16): kload(n)
    tagcalc(g)
    g.stamp("kiss")
    q_loads = [f"global_load_dwordx4 {r(QG+4*u,4)}, v{vQG}, {sr(pWS,2)} offset:{16*u} sc1" for u in range(2)]
    for n in range(o.v2 + 1):
        if n == o.ptpos:
            g.c("bring the lines this workgroup will write later into this die's L2")
            g.vmem(f"global_load_dword v{DUM}, v{vOW}, {sr(pWS,2)} {o.ptpol}", "pt")
            g.vmem(f"global_load_dword v{DUM}, v{vMLp}, {sr(pWS,2)} {o.ptpol}", "pt")
            if o.tlbout: g.vmem(f"global_load_ushort v{DUM}, v{vOut}, {sr(pOUT,2)}", "pt")
        if n == o.v1:
            g.stamp("fwait")
            if o.qflag:
                flag_wait(g, "qf", VTAGM, sFL)
                if o.stamps: e("s_mov_b32 s84, 0\ns_mov_b32 s86, 0\ns_mov_b32 s88, 0")
            g.stamp("qiss")
            for ld in q_loads: g.vmem(ld, "qg")
            if o.qbar: e("s_barrier")
        if n == o.mark:
            e("s_mov_b64 exec, 1")
            g.vmem(f"global_store_dword v{vMkA}, v{VTAG}, {sr(pWS,2)} sc1", "mk")
            e("s_mov_b64 exec, -1")
        if n < o.v2: vload(n)
    g.stamp("viss")
    def vperm(n, ee):
        d = ee >> 1
        e(f"v_perm_b32 v{(TV0 if n < 4 else V)+4*ee+(n&3)}, v{V+4*(2*n+1)+d}, v{V+4*(2*n)+d}, s{sHI if ee & 1 else sLO}")
    npre = max(0, min(o.v1 // 2 - 1, 7))
    for n in range(npre):
        g.wait(f"v{2*n+1}")
        for ee in range(8): vperm(n, ee)
    check_retry_fs(g, "q", q_loads, [QG+1, QG+3, QG+5, QG+7], f"s_waitcnt vmcnt({g.cnt('qg')})")
    g.stamp("qgot")
    for k in range(4): e(f"v_mov_b32 v{Q+k}, v{QG+2*k}")
    e("s_nop 1")
    for n in range(16): e(f"v_mfma_f32_16x16x32_bf16 {r(K+4*n,4)}, {r(K+4*n,4)}, {r(Q,4)}, 0")
    gap0, o.gap = o.gap, 0
    for n in range(o.v2, o.v3): vload(n)
    for h in range(2):
        for c in range(4):
            for n in range(8*h, 8*h+8):
                if c == 0: e(f"v_mov_b32_dpp v{S+n}, v{K+4*n} quad_perm:[0,0,0,0] row_mask:0xf bank_mask:0xf")
                else: e(f"v_add_f32_dpp v{S+n}, v{K+4*n+c}, v{S+n} quad_perm:[{c},{c},{c},{c}] row_mask:0xf bank_mask:0xf")
    for n in range(8): e(f"v_cvt_pk_bf16_f32 v{T+n}, v{S+2*n}, v{S+2*n+1}")
    for n in range(8): e(f"v_lshlrev_b32 v{S+2*n}, 16, v{T+n}\nv_and_b32 v{S+2*n+1}, 0xffff0000, v{T+n}")
    for n in range(8): e(f"v_pk_mul_f32 {r(S+2*n,2)}, {r(S+2*n,2)}, {sr(sSC,2)}")
    for n in range(8): e(f"v_cvt_pk_bf16_f32 v{T+n}, v{S+2*n}, v{S+2*n+1}")
    for n in range(8): e(f"v_lshlrev_b32 v{S+2*n}, 16, v{T+n}\nv_and_b32 v{S+2*n+1}, 0xffff0000, v{T+n}")
    m, l = T+8, T+9
    for k in range(5): e(f"v_max3_f32 v{T+k}, v{S+3*k}, v{S+3*k+1}, v{S+3*k+2}")
    e(f"v_max3_f32 v{T}, v{T}, v{T+1}, v{T+2}\nv_max3_f32 v{T+3}, v{T+3}, v{T+4}, v{S+15}\nv_max_f32 v{m}, v{T}, v{T+3}")
    xor_reduce(g, m, T, "max", (5, 4))
    for n in range(8): e(f"v_pk_add_f32 {r(S+2*n,2)}, {r(S+2*n,2)}, {r(m,2)} op_sel_hi:[1,0] neg_lo:[0,1] neg_hi:[0,1]")
    for n in range(8): e(f"v_pk_mul_f32 {r(S+2*n,2)}, {r(S+2*n,2)}, {sr(sL2,2)}")
    for k in range(16): e(f"v_exp_f32 v{S+k}, v{S+k}")
    for n in range(4): e(f"v_pk_add_f32 {r(T+2*n,2)}, {r(S+4*n,2)}, {r(S+4*n+2,2)}")
    e(f"""
    v_pk_add_f32 {r(T,2)}, {r(T,2)}, {r(T+2,2)}
    v_pk_add_f32 {r(T+4,2)}, {r(T+4,2)}, {r(T+6,2)}
    v_pk_add_f32 {r(T,2)}, {r(T,2)}, {r(T+4,2)}
    v_add_f32 v{l}, v{T}, v{T+1}
    v_mov_b32 v{T}, v{l}
    v_cvt_pk_bf16_f32 v{P8}, v{S}, v{S+1}
    v_cvt_pk_bf16_f32 v{P8+1}, v{S+2}, v{S+3}
    v_permlane32_swap_b32 v{l}, v{T}
    v_add_f32 v{l}, v{l}, v{T}
    v_mov_b32 v{T}, v{l}
    v_cvt_pk_bf16_f32 v{P8+2}, v{S+4}, v{S+5}
    v_cvt_pk_bf16_f32 v{P8+3}, v{S+6}, v{S+7}
    v_permlane16_swap_b32 v{l}, v{T}
    v_add_f32 v{l}, v{l}, v{T}
    s_mov_b64 exec, 0x1111
    ds_write_b64 v{vMLw}, {r(m,2)} offset:{L_ML}
    s_mov_b64 exec, -1
    """)
    for n in range(4, 8): e(f"v_cvt_pk_bf16_f32 v{P8+n}, v{S+2*n}, v{S+2*n+1}")
    g.stamp("p")
    for n in range(max(o.v2, o.v3), 16): vload(n)
    e(f"""
    s_waitcnt lgkmcnt(0)
    s_barrier
    ds_read_b128 {r(T,4)}, v{vMLr} offset:{L_ML}
    ds_read_b128 {r(T+4,4)}, v{vMLr} offset:{L_ML+16}
    ds_read_b32 v{vFr}, v{vFr} offset:{L_ML}
    """)
    if npre < 7:
        g.wait(f"v{2*npre+1}")
        for ee in range(8): vperm(npre, ee)
        npre += 1
    e(f"""
    s_waitcnt lgkmcnt(0)
    v_max3_f32 v{T+12}, v{T}, v{T+2}, v{T+4}
    v_max_f32 v{T+12}, v{T+12}, v{T+6}
    v_sub_f32 v{vFr}, v{vFr}, v{T+12}
    v_sub_f32 v{T}, v{T}, v{T+12}
    v_sub_f32 v{T+2}, v{T+2}, v{T+12}
    v_sub_f32 v{T+4}, v{T+4}, v{T+12}
    v_sub_f32 v{T+6}, v{T+6}, v{T+12}
    v_mul_f32 v{vFr}, s{sL2}, v{vFr}
    v_mul_f32 v{T}, s{sL2}, v{T}
    v_mul_f32 v{T+2}, s{sL2}, v{T+2}
    v_mul_f32 v{T+4}, s{sL2}, v{T+4}
    v_mul_f32 v{T+6}, s{sL2}, v{T+6}
    v_exp_f32 v{vFr}, v{vFr}
    v_exp_f32 v{T}, v{T}
    v_exp_f32 v{T+2}, v{T+2}
    v_exp_f32 v{T+4}, v{T+4}
    v_exp_f32 v{T+6}, v{T+6}
    v_mul_f32 v{T+14}, v{T}, v{T+1}
    v_fmac_f32 v{T+14}, v{T+2}, v{T+3}
    v_fmac_f32 v{T+14}, v{T+4}, v{T+5}
    v_fmac_f32 v{T+14}, v{T+6}, v{T+7}
    v_mov_b32 v{T+13}, s{sTAG}
    v_mov_b32 v{T+15}, s{sTAG}
    s_lshl_b64 exec, 1, s55
    """)
    fs_store(g, [(f"global_store_dwordx4 v{vMLp}, {r(T+12,4)}, {sr(pWS,2)}", True)], "mlpub")
    e("s_mov_b64 exec, -1")
    g.stamp("mlp")
    def pv(b, ee): e(f"v_mfma_f32_16x16x32_bf16 {r(DA+4*ee,4)}, {r(P8+4*b,4)}, {r((TV0 if b == 0 else V)+4*ee,4)}, {'0' if b == 0 else r(DA+4*ee,4)}")
    def sc(ee): e(f"v_mul_f32 v{OUT+ee}, v{DA+4*ee}, v{vFr}")
    if npre >= 4:
        for ee in range(8): pv(0, ee)
    for n in range(npre, 7):
        g.wait(f"v{2*n+1}")
        for ee in range(8): vperm(n, ee)
        if n == 3:
            for ee in range(8): pv(0, ee)
    g.wait("v15")
    g.stamp("v")
    for ee in range(3): vperm(7, ee)
    for ee in range(8):
        pv(1, ee)
        if ee + 3 < 8: vperm(7, ee + 3)
        if ee >= 5: sc(ee - 5)
    sc(3)
    e(f"ds_write_b128 v{vLw}, {r(OUT,4)} offset:{L_O}")
    sc(4); e("s_nop 0"); sc(5); e("s_nop 0"); sc(6); e("s_nop 0"); sc(7)
    e(f"""
    ds_write_b128 v{vLw}, {r(OUT+4,4)} offset:{L_O+1024}
    s_waitcnt lgkmcnt(0)
    s_barrier
    """)
    sum4(g, vOrd, L_O, 4)
    fs_store(g, [(f"global_store_dwordx4 v{vOW}, {r(T+12,4)}, {sr(pWS,2)}", True)], "opub")
    g.stamp("opub")
    e(f"s_cmp_ge_u32 s{sW}, 2\ns_cbranch_scc1 L_out")
    g.c("final reduction of two output columns per wave: lanes 0-31 attention partials, lanes 32-63 FFN partials")
    if o.agate: vec_wait(g, "af", vAFr, 64)
    g.stamp("agate")
    f_loads = [f"global_load_dwordx4 {r(T+8,4)}, v{vFin}, {sr(pWS,2)} sc1"]
    e(f_loads[0])
    check_retry(g, "a", f_loads, [T+9, T+11], "s_waitcnt vmcnt(0)")
    g.stamp("agot")
    e(f"""
    s_nop 1
    v_permlane16_swap_b32 v{T+8}, v{T+10}
    v_add_f32 v{T+1}, v{T+8}, v{T+10}
    """)
    for c in (8, 4, 2, 1):
        e("s_nop 1"); dpp(g, T+1, f"row_ror:{c} row_mask:0xf")
    g.c("rows 0/1 hold A of the two columns, rows 2/3 hold B")
    bf16r(g, T+1, T+1)
    e(f"v_mov_b32 v{T}, v{T+1}\ns_nop 1\nv_permlane32_swap_b32 v{T+1}, v{T}\nv_add_f32 v{T+1}, v{vXres}, v{T+1}")
    bf16r(g, T+1, T+1)
    e(f"""
    v_add_f32 v{T+1}, v{T+1}, v{T}
    v_cvt_pk_bf16_f32 v{T+1}, v{T+1}, v{T+1}
    s_mov_b64 exec, 0x10001
    global_store_short v{vOut}, v{T+1}, {sr(pOUT,2)} {o.outpol}
    s_cmp_lg_u32 s2, 128
    s_cbranch_scc1 L_out
    v_mov_b32 v{T+2}, {EPOCH:#x}
    global_store_dword v{T+2}, v{VTAG}, {sr(pWS,2)} sc1
    """)
    g.stamp("fin")
    if o.echo and not o.echop:
        e(f"""
        s_memtime s[94:95]
        s_waitcnt lgkmcnt(0)
        s_sub_u32 s90, s90, s92
        s_mul_i32 s90, s90, {o.echok}
        L_echo:
        s_memtime s[96:97]
        s_waitcnt lgkmcnt(0)
        s_sub_u32 s96, s96, s94
        s_cmp_lt_u32 s96, s90
        s_cbranch_scc1 L_echo
        """)
    e("s_branch L_out" if o.stamps else "s_endpgm")
    cut3 = len(g.lines)
    g.lines = g.lines[:cut1] + g.lines[cut2:cut3] + g.lines[cut1:cut2]
    g.newrole([], 0)
    e("L_out:")
    if o.stamps:
        e(f"""
        s_mov_b64 exec, -1
        s_waitcnt vmcnt(0)
        s_memtime s[98:99]
        s_memrealtime s[46:47]
        v_mov_b32 v{VST}, 0
        s_waitcnt lgkmcnt(0)
        """)
        for k in range(g.maxst): e(f"v_writelane_b32 v{VST}, s{sST+2*k}, {k}")
        e(f"""
        v_writelane_b32 v{VST}, s98, 61
        v_writelane_b32 v{VST}, s100, 62
        v_writelane_b32 v{VST}, s46, 63
        v_writelane_b32 v{VST}, s{sSPIN}, 59
        v_writelane_b32 v{VST}, s{sCO}, 60
        v_writelane_b32 v{VST}, s97, 58
        s_lshl_b32 s45, s2, 10
        s_add_u32 s45, s45, {STAMPS:#x}
        v_lshl_add_u32 v{T}, v0, 2, s45
        global_store_dword v{T}, v{VST}, {sr(pWS,2)}
        """)
    e("L_end:\ns_endpgm")
    for t in g.tail: e(t)
    e("L_code_end:")
    if o.stamps:
        assert sST + 2*g.maxst <= 96, g.maxst
        z = [f"    s_mov_b32 s{sST+2*k}, 0" for k in range(1, g.maxst)]
        g.lines[3:3] = z
    return g

HEADER = open(f"cdna_kernels/{NAME}.s.ref").read().split("; Override launch geometry")[0]

def emit(o, path):
    global sFL
    sFL = 80 if o.stamps else 64
    g = build(o)
    errs = hazard.check(g.lines)
    for x in errs: print(x, file=sys.stderr)
    txt = HEADER
    txt += f"; @launch grid=(256,1,1) block=(256,1,1) lds={LDS_BYTES}\n"
    txt += f'.amdgcn_target "amdgcn-amd-amdhsa--gfx950"\n.text\n.globl {NAME}_kernel\n.p2align 12\n.type {NAME}_kernel,@function\n'
    txt += f".set CODE_BYTES, L_code_end - {NAME}_kernel\n"
    txt += "\n".join(g.lines) + "\n"
    txt += f'''.section .rodata,"a"
.p2align 6
.amdhsa_kernel {NAME}_kernel
  .amdhsa_next_free_vgpr {NVGPR}
  .amdhsa_next_free_sgpr {102 if (o.stamps or o.echo) else 80}
  .amdhsa_accum_offset {NVGPR}
  .amdhsa_group_segment_fixed_size 0
  .amdhsa_kernarg_size 88
  .amdhsa_user_sgpr_count 2
  .amdhsa_user_sgpr_kernarg_segment_ptr 1
  .amdhsa_system_sgpr_workgroup_id_x 1
  .amdhsa_float_denorm_mode_32 3
  .amdhsa_float_denorm_mode_16_64 3
.end_amdhsa_kernel
'''
    open(path, "w").write(txt)
    if o.stamps: open(path + ".names", "w").write("WG\n" + "\n".join(" ".join(n) for n in g.allnames))
    return len(errs)

if __name__ == "__main__":
    ap = argparse.ArgumentParser()
    ap.add_argument("out")
    ap.add_argument("--stamps", action="store_true")
    ap.add_argument("--echo", default="")
    ap.add_argument("--echop", type=int, default=0)
    ap.add_argument("--echowg", type=int, default=0)
    ap.add_argument("--echok", type=int, default=4)
    ap.add_argument("--outpol", default="")
    ap.add_argument("--ptpol", default="nt")
    ap.add_argument("--ptpos", type=int, default=0)
    ap.add_argument("--ptab", type=int, default=1)
    ap.add_argument("--tlbout", type=int, default=1)
    ap.add_argument("--gap", type=int, default=4)
    ap.add_argument("--gapq", type=int, default=2)
    ap.add_argument("--v1", type=int, default=4)
    ap.add_argument("--qflag", type=int, default=1)
    ap.add_argument("--qbar", type=int, default=0)
    ap.add_argument("--oq", type=int, default=2)
    ap.add_argument("--owait", default="")
    ap.add_argument("--mark", type=int, default=8)
    ap.add_argument("--bmode", default="early")
    ap.add_argument("--wqpol", default="nt")
    ap.add_argument("--qb4", type=int, default=1)
    ap.add_argument("--k0", type=int, default=0)
    ap.add_argument("--adelay", type=int, default=1)
    ap.add_argument("--q2pos", type=int, default=0)
    ap.add_argument("--w1pos", type=int, default=1)
    ap.add_argument("--w1pf", type=int, default=1)
    ap.add_argument("--hwait", type=int, default=8)
    ap.add_argument("--fine", type=int, default=0)
    ap.add_argument("--s0", type=int, default=1)
    ap.add_argument("--cpf", type=int, default=1)
    ap.add_argument("--vpf", type=int, default=8)
    ap.add_argument("--vpfpos", type=int, default=1)
    ap.add_argument("--v2", type=int, default=16)
    ap.add_argument("--v3", type=int, default=16)
    ap.add_argument("--agate", type=int, default=1)
    o = ap.parse_args()
    import os
    if emit(o, o.out):
        os.remove(o.out); sys.exit(1)
```

```python
import sys, struct, argparse
sys.path.insert(0, "gen")
import hazard

NAME = "parallel_sum__sliding_block_cached__dense_activation_silu__decode"
def f2u(x): return struct.unpack("<I", struct.pack("<f", x))[0]
LOG2E = f2u(1.4426950408889634); SCALE = f2u(128 ** -0.5); EPS = f2u(1e-5)

OREC, AREC, BREC, QREC, HREC = 0x0, 0x80000, 0xA0000, 0xC0000, 0xC4000
SDELTA = 0x10000
MLREC, QFLG, OFLG, AFLG, MARK, EPOCH = 0xE0000, 0xE2000, 0xE4000, 0xEC000, 0xEE000, 0xF8000
NREP = 16
STAMPS = 0x400000
L_RED, L_RH, L_ML, L_O, L_B, L_A = 0, 512, 1024, 2048, 2048, 4096
LDS_BYTES = 10240
SPIN_LIMIT = 0x40000

class G:
    def __init__(s, opt):
        s.o = opt; s.lines = []; s.vm = []; s.nst = 0; s.lab = 0; s.names = []; s.tail = []; s.allnames = []; s.maxst = 0
    def e(s, t):
        for ln in t.strip("\n").split("\n"):
            if not ln.strip(): continue
            s.lines.append("    " + ln.strip() if not ln.strip().endswith(":") else ln.strip())
    def c(s, t): s.lines.append("    ; " + t)
    def vmem(s, t, name):
        s.e(t); s.vm.append(name)
    def cnt(s, name):
        idx = max(k for k, n in enumerate(s.vm) if n == name)
        n = len(s.vm) - 1 - idx
        assert n < 64
        return n
    def wait(s, name, extra=""):
        s.e(f"s_waitcnt vmcnt({s.cnt(name)}) {extra}".strip())
    def stamp(s, label=""):
        if s.o.echo == label: s.e("s_memrealtime s[90:91]" if s.o.echom == "rt" else "s_memtime s[90:91]")
        if not s.o.stamps: return
        if s.o.fine and label in ("w2","bpub","mark","wgt","wo","h"): return
        k = s.nst; s.nst += 1; s.maxst = max(s.maxst, s.nst)
        s.e(f"s_memtime s[{sST+2*k}:{sST+2*k+1}]")
        s.names.append(label)
    def newrole(s, vm, nst):
        s.allnames.append(s.names); s.names = s.names[:nst]; s.nst = nst; s.vm = list(vm)
    def label(s, base):
        s.lab += 1; return f"L_{base}_{s.lab}"

def r(b, n=1): return f"v{b}" if n == 1 else f"v[{b}:{b+n-1}]"
def sr(b, n=1): return f"s{b}" if n == 1 else f"s[{b}:{b+n-1}]"

TID, VL, VL16, VTAG = 0, 1, 2, 3
T = 4
DUM, VTAGM, VW, VST = 20, 21, 22, 23
X8, XQ, XH, HG = 24, 28, 32, 34
WQ = 36
W1 = 68
AQ = 84
W2 = 36
WO = 52
WOP = 92
MLG, OG = 124, 140
vWQ, vW1, vW2o, vWOo, vPub, vHp, vRedW, vOG, vMLG, vL8, vT8, vHG, vPT, vAp, vMk, vAF, vWQ2, vW1b, vVpf, vVpf2 = range(156, 176)
K, V = 24, 88
TV0 = 208
S = 152
DA = 152
QG = 168
Q = 176
P8 = 184
OUT = 24
vKo, vVo, vOW, vQG, vOrd, vFr, vMLr, vMLw, vLw, vOF, vFin, vOut, vXres, vAFr, vMkA, vMLp = range(192, 208)
NVGPR = 240
pX, pK, pV, pWQ, pWO, pW1, pW2, pOUT, pWS = 4, 6, 8, 10, 12, 16, 18, 20, 24
sG, sJ, sW, sTAG, sLO, sHI = 26, 27, 28, 29, 30, 31
sR, sSPIN, sXRES = 22, 14, 15
S0 = 32
sSC, sL2 = 48, 50
sH = 52
sXCC, sCO, sCNT, sFOFF = 59, 3, 0, 1
pWS2, pWSX = 60, 62
sST = 64

def dpp(g, v, ctrl, op="add"):
    g.e(f"v_{op}_f32_dpp v{v}, v{v}, v{v} {ctrl} bank_mask:0xf")
def wave_sum_to_sgpr(g, v, sd):
    for c in ("row_ror:8 row_mask:0xf", "row_ror:4 row_mask:0xf", "row_ror:2 row_mask:0xf", "row_ror:1 row_mask:0xf",
              "row_bcast:15 row_mask:0xa", "row_bcast:31 row_mask:0xc"):
        g.e("s_nop 1"); dpp(g, v, c)
    g.e(f"s_nop 0\nv_readlane_b32 s{sd}, v{v}, 63\ns_nop 1")
def bf16r(g, d, s_):
    g.e(f"v_cvt_pk_bf16_f32 v{d}, v{s_}, v{s_}\nv_lshlrev_b32 v{d}, 16, v{d}")
def xor_reduce(g, v, t, op, bits):
    for b in bits:
        sw = "v_permlane32_swap_b32" if b == 5 else "v_permlane16_swap_b32"
        g.e(f"v_mov_b32 v{t}, v{v}\ns_nop 1\n{sw} v{v}, v{t}\nv_{op}_f32 v{v}, v{v}, v{t}")

def check_retry(g, name, loads, tags, first_wait):
    slow, ok = g.label(name + "s"), g.label(name + "k")
    g.e(first_wait)
    for t in tags: g.e(f"v_cmpx_eq_u32 vcc, v{VTAG}, v{t}")
    g.e(f"s_andn2_b64 s[{sR}:{sR+1}], -1, exec\ns_cbranch_scc1 {slow}\n{ok}:")
    t_ = [f"{slow}:\ns_sub_u32 s{sSPIN}, s{sSPIN}, 1\ns_cbranch_scc1 L_end\ns_mov_b64 exec, s[{sR}:{sR+1}]"] + loads + ["s_waitcnt vmcnt(0)"]
    t_ += [f"v_cmpx_eq_u32 vcc, v{VTAG}, v{t}" for t in tags]
    t_.append(f"s_andn2_b64 s[{sR}:{sR+1}], s[{sR}:{sR+1}], exec\ns_cbranch_scc1 {slow}\ns_mov_b64 exec, -1\ns_branch {ok}")
    g.tail += t_

def check_retry_fs(g, name, loads, tags, first_wait):
    slow, lp, ok = g.label(name + "s"), g.label(name + "l"), g.label(name + "k")
    g.e(first_wait)
    for t in tags: g.e(f"v_cmpx_eq_u32 vcc, v{VTAGM}, v{t}")
    g.e(f"s_andn2_b64 s[{sR}:{sR+1}], -1, exec\ns_cbranch_scc1 {slow}\n{ok}:")
    t_ = [f"{slow}:\ns_mov_b32 s{sCNT}, 0\n{lp}:",
          f"s_sub_u32 s{sSPIN}, s{sSPIN}, 1\ns_cbranch_scc1 L_end",
          f"s_add_u32 s{sCNT}, s{sCNT}, 1\ns_and_b32 s{pWSX}, s{sCNT}, 3\ns_cmp_eq_u32 s{pWSX}, 3",
          f"s_cselect_b32 s{pWSX}, s{pWS2}, s{pWS}\ns_cselect_b32 s{pWSX+1}, s{pWS2+1}, s{pWS+1}",
          f"s_mov_b64 exec, s[{sR}:{sR+1}]"]
    t_ += [l.replace(sr(pWS,2), sr(pWSX,2)) for l in loads]
    t_.append("s_waitcnt vmcnt(0)")
    for t in tags: t_.append(f"v_xor_b32 v{T}, v{VTAG}, v{t}\nv_cmpx_gt_u32 vcc, 16, v{T}")
    t_.append(f"s_mov_b64 s[56:57], exec")
    for t in tags: t_.append(f"v_cmpx_eq_u32 vcc, v{VTAGM}, v{t}")
    t_.append(f"s_cmp_eq_u64 s[56:57], exec\ns_cselect_b32 s{sCO}, s{sCO}, 0")
    t_.append(f"s_andn2_b64 s[{sR}:{sR+1}], s[{sR}:{sR+1}], s[56:57]\ns_cbranch_scc1 {lp}\ns_mov_b64 exec, -1\ns_branch {ok}")
    g.tail += t_

def fs_store(g, texts, name):
    sl, bk = g.label("st"), g.label("stb")
    g.e(f"s_cmp_eq_u32 s{sCO}, 0\ns_cbranch_scc1 {sl}")
    for t, st in texts:
        if st: g.vmem(t, name)
        else: g.e(t)
    g.e(f"{bk}:")
    g.tail.append(f"{sl}:\n" + "\n".join(t + (" sc1" if st else "") for t, st in texts) + f"\ns_branch {bk}")

def flag_wait(g, name, vt, sdst):
    lp, ok = g.label(name), g.label(name + "k")
    g.e(f"s_mov_b32 s{sCNT}, {NREP}\n{lp}:\ns_load_dwordx16 {sr(sdst,16)}, {sr(pWS,2)}, s{sFOFF}\ns_mov_b64 exec, -1\ns_add_u32 s{sFOFF}, s{sFOFF}, 64\ns_sub_u32 s{sCNT}, s{sCNT}, 1\ns_cmp_eq_u32 s{sCNT}, 0\ns_waitcnt lgkmcnt(0)\ns_cbranch_scc1 {ok}")
    for k in range(16): g.e(f"v_cmpx_eq_u32 vcc, s{sdst+k}, v{vt}")
    g.e(f"s_cbranch_execz {lp}\n{ok}:")
    if g.o.stamps: g.e(f"s_mov_b32 s97, s{sCNT}")

def vec_wait(g, name, addr, limit):
    lp, ok = g.label(name), g.label(name + "k")
    g.e(f"""
    s_mov_b32 s{sCNT}, {limit}
    {lp}:
    global_load_dword v{DUM}, v{addr}, {sr(pWS,2)} sc1
    s_sub_u32 s{sCNT}, s{sCNT}, 1
    s_cbranch_scc1 {ok}
    s_waitcnt vmcnt(0)
    v_cmp_ne_u32 vcc, v{VTAG}, v{DUM}
    s_cbranch_vccnz {lp}
    {ok}:
    """)
    g.vm = ["x"] * 0

def tagcalc(g):
    g.e(f"""
    s_mul_i32 s{sTAG}, s{sTAG}, 0x9E3779B1
    s_add_u32 s{sTAG}, s{sTAG}, 0x7F4A7C15
    s_xor_b32 s{sXCC}, s{sXCC}, s{sTAG}
    v_mov_b32 v{VTAG}, s{sTAG}
    v_mov_b32 v{VTAGM}, s{sXCC}
    """)

def sum4(g, addr, base, stride512):
    b = base // 512
    g.e(f"""
    ds_read2st64_b64 {r(T,4)}, v{addr} offset0:{b} offset1:{b+stride512}
    ds_read2st64_b64 {r(T+4,4)}, v{addr} offset0:{b+2*stride512} offset1:{b+3*stride512}
    s_waitcnt lgkmcnt(0)
    v_pk_add_f32 {r(T,2)}, {r(T,2)}, {r(T+2,2)}
    v_pk_add_f32 {r(T+4,2)}, {r(T+4,2)}, {r(T+6,2)}
    v_add_f32 v{T+12}, v{T}, v{T+4}
    v_add_f32 v{T+14}, v{T+1}, v{T+5}
    """)

def build(o):
    g = G(o); e = g.e
    NT = "nt"
    e(f"{NAME}_kernel:")
    e("s_cmp_ge_u32 s2, 256\ns_cbranch_scc1 L_end")
    e("s_load_dwordx16 s[4:19], s[0:1], 0\ns_load_dwordx2 s[20:21], s[0:1], 64\ns_load_dwordx2 s[24:25], s[0:1], 80")
    if o.echo: e("s_memrealtime s[92:93]" if o.echom == "rt" else "s_memtime s[92:93]")
    if o.stamps:
        e(f"s_memrealtime s[100:101]"); g.stamp("start")
    e(f"v_lshrrev_b32 v{VW}, 6, v0\ns_getpc_b64 s[{sR}:{sR+1}]")
    e(f"""
    v_readfirstlane_b32 s{sW}, v{VW}
    v_and_b32 v{VL}, 63, v0
    s_and_b32 s{sG}, s2, 7
    s_bfe_u32 s{sJ}, s2, 0x40003
    v_lshlrev_b32 v{VL16}, 4, v{VL}
    s_getreg_b32 s{sXCC}, hwreg(HW_REG_XCC_ID)
    s_mov_b32 s{sLO}, 0x05040100
    s_mov_b32 s{sHI}, 0x07060302
    s_mov_b32 s{sSC}, {EPOCH:#x}
    v_and_b32 v{T+12}, 3, v0
    v_lshlrev_b32 v{T+12}, 4, v{T+12}
    s_and_b32 s{sXCC}, s{sXCC}, 15
    s_cmp_ge_u32 s2, 128
    s_cbranch_scc1 L_att
    """)
    vm0, nst0 = list(g.vm), g.nst
    e(f"""
    v_lshrrev_b32 v{T+10}, 2, v0
    s_and_b32 s37, s{sJ}, 1
    s_lshl_b32 s38, s37, 3
    v_lshl_add_u32 v{T+3}, v{T+10}, 4, s38
    v_xor_b32 v{T+6}, 8, v{T+3}
    s_lshl_b32 s37, s37, 15
    s_min_u32 s32, s{sJ}, 13
    s_lshr_b32 s33, s32, 1
    s_and_b32 s34, s32, 1
    s_lshl_b32 s35, s34, 9
    v_lshl_add_u32 v{T+4}, v{T+10}, 3, s35    ; x slice (h)
    s_lshl_b32 s35, s{sG}, 10
    s_lshl_b32 s36, s{sJ}, 6
    s_add_u32 s35, s35, s36
    s_add_u32 s35, s35, s37
    v_lshl_add_u32 v{vWQ}, v{T+10}, 16, s35
    v_add_u32 v{vWQ}, v{T+12}, v{vWQ}
    v_xor_b32 v{vWQ2}, 0x8000, v{vWQ}
    s_lshl_b32 s35, s{sG}, 11
    s_lshl_b32 s36, s{sJ}, 7
    s_add_u32 s35, s35, s36
    s_add_u32 s35, s35, {QREC:#x}
    v_lshl_add_u32 v{vPub}, v{VL}, 3, s35
    s_lshl_b32 s35, s{sG}, 10
    s_lshl_b32 s36, s{sJ}, 2
    s_add_u32 s35, s35, s36
    s_add_u32 s35, s35, {QFLG-16*64:#x}
    v_lshl_add_u32 v{T+5}, v{VL}, 6, s35
    v_cmp_lt_u32 vcc, 15, v{VL}
    s_lshl_b32 s35, s{sG}, 12
    s_lshl_b32 s36, s32, 8
    s_add_u32 s35, s35, s36
    s_add_u32 s35, s35, {HREC-32*16:#x}
    v_cndmask_b32 v{vPub}, v{vPub}, v{T+5}, vcc
    v_add_u32 v{T+5}, s35, v{VL16}
    v_cmp_lt_u32 vcc, 31, v{VL}
    s_nop 1
    v_cndmask_b32 v{vPub}, v{vPub}, v{T+5}, vcc
    s_waitcnt lgkmcnt(0)
    """)
    g.stamp("karg")
    g.vmem(f"global_load_dwordx4 {r(X8,4)}, v{VL16}, {sr(pX,2)}", "x")
    g.vmem(f"global_load_dwordx2 {r(XQ,2)}, v{T+3}, {sr(pX,2)}", "x")
    g.vmem(f"global_load_dwordx2 {r(XQ+2,2)}, v{T+6}, {sr(pX,2)}", "x")
    g.vmem(f"global_load_dwordx2 {r(XH,2)}, v{T+4}, {sr(pX,2)}", "x")
    if o.s0: e("s_barrier")
    def wqload(u0, u1):
        for u in range(u0, u1):
            va = vWQ if u < 4 else vWQ2
            g.vmem(f"global_load_dwordx4 {r(WQ+4*u,4)}, v{va}, {sr(pWQ,2)} {o.wqpol}", f"wq{u}")
            if u & 3 != 3: e(f"v_add_u32 v{va}, 0x2000, v{va}")
            if o.gapq: e(f"s_nop {o.gapq-1}")
    wqload(0, 4)
    e(f"s_load_dword s{sTAG}, {sr(pWS,2)}, s{sSC}")
    e("s_branch L_proj2")
    cut1 = len(g.lines)
    e("L_proj2:")
    e(f"""
    s_mov_b32 s{sSPIN}, {SPIN_LIMIT:#x}
    s_add_u32 s{pWS2}, s{pWS}, {SDELTA:#x}
    s_addc_u32 s{pWS2+1}, s{pWS+1}, 0
    s_mul_i32 s35, s34, {256*3584}
    s_mul_i32 s36, s{sG}, 448
    s_add_u32 s35, s35, s36
    s_lshl_b32 s36, s33, 6
    s_add_u32 s35, s35, s36
    v_mul_u32_u24 v{vW1}, {4*3584}, v{T+10}
    v_add3_u32 v{vW1}, v{vW1}, v{T+12}, s35
    s_lshr_b32 s37, s{sJ}, 2                  ; head in group / w2 row block
    s_and_b32 s38, s{sJ}, 3                   ; column quarter
    s_lshl_b32 s39, s{sG}, 2
    s_add_u32 s39, s39, s37                   ; p = 4g + (j>>2)
    s_lshl_b32 s40, s38, 8
    s_add_u32 s40, s40, 4096
    v_lshl_add_u32 v{T+3}, v{VL}, 2, s40
    s_mul_i32 s35, s39, {56*1024}
    v_mul_u32_u24 v{vW2o}, {14*1024}, v{VW}
    v_add3_u32 v{vW2o}, v{vW2o}, v{T+3}, s35
    s_lshl_b32 s35, s39, 17
    v_lshl_add_u32 v{vWOo}, v{VW}, 15, v{T+3}
    v_add_u32 v{vWOo}, s35, v{vWOo}
    s_lshl_b32 s35, s38, 15
    s_lshl_b32 s36, s39, 10
    s_add_u32 s35, s35, s36
    s_add_u32 s35, s35, {AREC:#x}
    s_add_u32 s36, s35, {BREC-AREC:#x}
    s_cmp_lt_u32 s{sW}, 2
    s_cselect_b32 s35, s35, s36
    v_add_u32 v{vAp}, s35, v{VL16}
    v_and_b32 v{T+4}, 127, v0
    v_lshl_add_u32 v{vPT}, v{T+4}, 3, s35
    v_and_b32 v{T+4}, 15, v0
    v_min_u32 v{T+4}, 13, v{T+4}
    s_mul_i32 s35, s37, 56
    s_mul_i32 s36, s{sW}, 14
    s_add_u32 s35, s35, s36
    v_add_u32 v{T+4}, s35, v{T+4}
    v_lshrrev_b32 v{T+5}, 5, v{T+4}
    v_and_b32 v{T+4}, 31, v{T+4}
    s_lshl_b32 s35, s{sG}, 12
    s_add_u32 s35, s35, {HREC:#x}
    v_lshl_add_u32 v{vHG}, v{T+5}, 9, s35
    v_lshl_add_u32 v{vHG}, v{T+4}, 3, v{vHG}
    v_bfe_u32 v{T+4}, v0, 4, 1
    v_lshl_add_u32 v{vHG}, v{T+4}, 8, v{vHG}
    v_lshlrev_b32 v{vRedW}, 1, v{T+12}
    v_lshl_add_u32 v{vRedW}, v{T+4}, 3, v{vRedW}
    v_bfe_u32 v{T+4}, v0, 5, 1
    v_lshl_add_u32 v{vRedW}, v{T+4}, 2, v{vRedW}
    v_lshl_add_u32 v{vRedW}, v{VW}, 7, v{vRedW}
    s_lshl_b32 s35, s39, 14
    v_lshl_add_u32 v{vOG}, v{VW}, 12, s35
    v_add_u32 v{vOG}, v{VL16}, v{vOG}
    s_lshl_b32 s35, s39, 8
    s_add_u32 s35, s35, {MLREC:#x}
    v_and_b32 v{T+4}, 48, v0
    v_add_u32 v{vMLG}, s35, v{T+4}
    v_lshlrev_b32 v{vL8}, 3, v{VL}
    v_lshlrev_b32 v{vT8}, 3, v0
    v_and_b32 v{T+4}, 15, v0
    v_lshlrev_b32 v{vHp}, 3, v{T+4}
    s_and_b32 s35, s2, 127
    s_lshl_b32 s35, s35, 7
    s_add_u32 s35, s35, {MARK:#x}
    v_mov_b32 v{vMk}, s35
    s_lshl_b32 s35, s{sG}, 7
    s_lshl_b32 s36, s{sJ}, 2
    s_add_u32 s35, s35, s36
    s_add_u32 s35, s35, {AFLG:#x}
    v_mov_b32 v{vAF}, s35
    s_mov_b32 s{sL2}, {LOG2E:#x}
    s_lshl_b32 s35, s{sG}, 24
    s_lshl_b32 s36, s{sJ}, 16
    s_add_u32 s35, s35, s36
    s_add_u32 s35, s35, 0xF00000
    s_add_u32 s36, s{sJ}, 8
    s_lshl_b32 s36, s36, 10
    v_lshl_add_u32 v{vVpf}, v{VL}, 7, s36
    v_and_b32 v{vVpf}, 0x3fff, v{vVpf}
    v_lshl_add_u32 v{T+4}, v{VW}, 14, s35
    v_xor_b32 v{vVpf2}, 0x2000, v{vVpf}
    v_add_u32 v{vVpf}, v{T+4}, v{vVpf}
    v_add_u32 v{vVpf2}, v{T+4}, v{vVpf2}
    """)
    def vpf():
        g.c("pull the tail of the partner workgroup's V into this die's L2")
        if o.vpf > 8:
            n = o.vpf - 8
            m = ((1 << (8*n)) - 1) << (64 - 8*n)
            e(f"s_mov_b32 exec_lo, {m & 0xffffffff:#x}\ns_mov_b32 exec_hi, {m >> 32:#x}")
            g.vmem(f"global_load_dword v{DUM}, v{vVpf2}, {sr(pV,2)} {NT}", "vpf")
            e("s_mov_b64 exec, -1")
        if 0 < o.vpf < 8:
            m = ((1 << (8*o.vpf)) - 1) << (64 - 8*o.vpf)
            e(f"s_mov_b32 exec_lo, {m & 0xffffffff:#x}\ns_mov_b32 exec_hi, {m >> 32:#x}")
        if o.vpf:
            g.vmem(f"global_load_dword v{DUM}, v{vVpf}, {sr(pV,2)} {NT}", "vpf")
            e("s_mov_b64 exec, -1")
    def w1load():
        e(f"v_add_u32 v{vW1b}, 7168, v{vW1}")
        for u in range(4):
            g.vmem(f"global_load_dwordx4 {r(W1+4*u,4)}, v{vW1 if u < 2 else vW1b}, {sr(pW1,2)} offset:{3584*(u&1)} {NT}", f"w1{u}")
            if o.gapq: e(f"s_nop {o.gapq}")
    def second():
        if o.qb4: e("s_barrier")
        wqload(4, 8)
        if o.w1pos == 0: e("s_barrier"); w1load()
    if o.q2pos == 0: second()
    g.c("layernorm")
    if o.fine: g.stamp("prex")
    g.wait("x")
    if o.fine: g.stamp("x")
    if o.q2pos == 1: second()
    U = T
    for d in range(4):
        e(f"v_lshlrev_b32 v{U+2*d}, 16, v{X8+d}\nv_and_b32 v{U+2*d+1}, 0xffff0000, v{X8+d}")
    e(f"""
    v_pk_add_f32 {r(T+8,2)}, {r(U,2)}, {r(U+2,2)}
    v_pk_add_f32 {r(T+10,2)}, {r(U+4,2)}, {r(U+6,2)}
    v_pk_add_f32 {r(T+8,2)}, {r(T+8,2)}, {r(T+10,2)}
    v_add_f32 v{T+8}, v{T+8}, v{T+9}
    """)
    wave_sum_to_sgpr(g, T+8, 44)
    e(f"v_mov_b32 v{T+12}, 0x3b000000\nv_mul_f32 v{T+10}, s44, v{T+12}")
    for d in range(4):
        e(f"v_pk_add_f32 {r(U+2*d,2)}, {r(U+2*d,2)}, {r(T+10,2)} op_sel_hi:[1,0] neg_lo:[0,1] neg_hi:[0,1]")
    e(f"v_pk_mul_f32 {r(T+8,2)}, {r(U,2)}, {r(U,2)}")
    for d in range(1, 4):
        e(f"v_pk_fma_f32 {r(T+8,2)}, {r(U+2*d,2)}, {r(U+2*d,2)}, {r(T+8,2)}")
    e(f"v_add_f32 v{T+8}, v{T+8}, v{T+9}")
    wave_sum_to_sgpr(g, T+8, 44)
    e(f"v_mul_f32 v{T+11}, s44, v{T+12}")
    bf16r(g, T+10, T+10)
    bf16r(g, T+11, T+11)
    e(f"v_add_f32 v{T+11}, {EPS:#x}, v{T+11}")
    bf16r(g, T+11, T+11)
    e(f"v_sqrt_f32 v{T+11}, v{T+11}\ns_nop 0")
    bf16r(g, T+11, T+11)
    e(f"v_rcp_f32 v{T+12}, v{T+11}")
    for k, x in enumerate((XQ, XQ+1, XQ+2, XQ+3, XH, XH+1)):
        a = U + 2*(k % 4)
        e(f"""
        v_lshlrev_b32 v{a}, 16, v{x}
        v_and_b32 v{a+1}, 0xffff0000, v{x}
        v_pk_add_f32 {r(a,2)}, {r(a,2)}, {r(T+10,2)} op_sel_hi:[1,0] neg_lo:[0,1] neg_hi:[0,1]
        v_cvt_pk_bf16_f32 v{x}, v{a}, v{a+1}
        v_lshlrev_b32 v{a}, 16, v{x}
        v_and_b32 v{a+1}, 0xffff0000, v{x}
        v_pk_mul_f32 {r(a,2)}, {r(a,2)}, {r(T+12,2)} op_sel_hi:[1,0]
        v_cvt_pk_bf16_f32 v{x}, v{a}, v{a+1}
        """)
    e("s_waitcnt lgkmcnt(0)")
    tagcalc(g)
    e(f"v_mov_b32 v{T+13}, s{sXCC}\nv_mov_b32 v{T+15}, s{sXCC}")
    g.stamp("ln")
    if o.q2pos == 2: second()
    def gemv_rows(W, X, npair, wname):
        for pr in range(npair):
            if wname: g.wait(f"{wname}{2*pr+1}")
            if wname == "wq" and o.fine: g.stamp(f"wq{2*pr+1}")
            for d in range(4):
                a, b = W + 8*pr + d, W + 8*pr + 4 + d
                e(f"v_perm_b32 v{T+2*d}, v{b}, v{a}, s{sLO}\nv_perm_b32 v{T+2*d+1}, v{b}, v{a}, s{sHI}")
            for k in range(8):
                e(f"v_dot2_f32_bf16 v{AQ+k}, v{T+k}, v{X+pr}, {'0' if pr == 0 else 'v%d' % (AQ+k)}")
    def col_reduce(base, who):
        A = AQ
        for k in range(0, 8, 2): e(f"v_permlane32_swap_b32 v{A+k}, v{A+k+1}")
        for k in range(0, 8, 2): e(f"v_add_f32 v{A+k}, v{A+k}, v{A+k+1}")
        e(f"v_permlane16_swap_b32 v{A}, v{A+2}\ns_nop 0\nv_permlane16_swap_b32 v{A+4}, v{A+6}")
        e(f"v_add_f32 v{A}, v{A}, v{A+2}\nv_add_f32 v{A+4}, v{A+4}, v{A+6}")
        for c in (8, 4):
            e("s_nop 0")
            for v in (A, A+4): dpp(g, v, f"row_ror:{c} row_mask:0xf")
        e(f"""
        s_mov_b32 exec_lo, 0x000f000f
        s_mov_b32 exec_hi, 0x000f000f
        ds_write2_b32 v{vRedW}, v{A}, v{A+4} offset0:{base//4} offset1:{base//4+4}
        s_mov_b64 exec, -1
        s_cmp_lg_u32 s{sW}, {who}
        s_waitcnt lgkmcnt(0)
        s_barrier
        """)
    def col_sum(base):
        b = base // 8
        e(f"""
        ds_read2_b64 {r(T,4)}, v{vHp} offset0:{b} offset1:{b+16}
        ds_read2_b64 {r(T+4,4)}, v{vHp} offset0:{b+32} offset1:{b+48}
        s_waitcnt lgkmcnt(0)
        v_pk_add_f32 {r(T,2)}, {r(T,2)}, {r(T+2,2)}
        v_pk_add_f32 {r(T+4,2)}, {r(T+4,2)}, {r(T+6,2)}
        v_add_f32 v{T+12}, v{T}, v{T+4}
        v_add_f32 v{T+14}, v{T+1}, v{T+5}
        """)
    g.c("q slice: 32 columns x 512 rows; h partial: 32 columns x 256 rows")
    gemv_rows(WQ, XQ, 4, "wq")
    g.stamp("wq")
    col_reduce(L_RED, 0)
    e("s_cbranch_scc1 L_noq")
    col_sum(L_RED)
    e(f"""
    v_cvt_pk_bf16_f32 v{T+12}, v{T+12}, v{T+14}
    s_mov_b64 exec, 0xffff
    global_store_dwordx2 v{vPub}, {r(T+12,2)}, {sr(pWS,2)}
    s_mov_b32 exec_lo, 0xffff0000
    global_store_dword v{vPub}, v{T+13}, {sr(pWS,2)}
    s_mov_b32 exec_lo, 0xffff
    global_store_dwordx2 v{vPub}, {r(T+12,2)}, {sr(pWS2,2)} sc1
    s_mov_b64 exec, -1
    """)
    g.stamp("qpub")
    if o.w1pos == 0:
        e("s_waitcnt vmcnt(3)\ns_branch L_w1ok\nL_noq:\ns_waitcnt vmcnt(0)\nL_w1ok:")
        gemv_rows(W1, XH, 2, None)
    else:
        e("L_noq:\ns_barrier")
        if o.vpfpos == 0: vpf()
        w1load()
        if o.vpfpos == 1: vpf()
        gemv_rows(W1, XH, 2, "w1")
    col_reduce(L_RH, 1)
    e("s_cbranch_scc1 L_noh")
    col_sum(L_RH)
    e(f"""
    s_mov_b32 exec_lo, 0
    s_mov_b32 exec_hi, 0xffff
    global_store_dwordx4 v{vPub}, {r(T+12,4)}, {sr(pWS,2)}
    global_store_dwordx4 v{vPub}, {r(T+12,4)}, {sr(pWS2,2)} sc1
    s_mov_b64 exec, -1
    """)
    g.stamp("hpub")
    e("L_noh:\ns_barrier")
    g.vm = []
    def w2load():
        e(f"v_add_u32 v{T+1}, 0x2000, v{vW2o}")
        for n in range(14):
            g.vmem(f"global_load_dword v{W2+n}, v{vW2o if n < 8 else T+1}, {sr(pW2,2)} offset:{(n&7)*1024-4096} {NT}", "w2")
    def woload():
        for n in range(32):
            if n and n % 8 == 0: e(f"v_add_u32 v{vWOo}, 0x2000, v{vWOo}")
            g.vmem(f"global_load_dword v{WO+n}, v{vWOo}, {sr(pWO,2)} offset:{(n & 7)*1024-4096} {NT}", f"wo{n}")
    if o.vpfpos == 2: vpf()
    if o.bmode == "early": w2load()
    if o.ptab:
        g.vmem(f"global_load_dword v{DUM}, v{vPT}, {sr(pWS,2)}", "pt")
    g.vmem(f"global_load_dword v{DUM}, v{vAF}, {sr(pWS,2)} {o.ptpol}", "pt")
    if o.mark >= 0: g.vmem(f"global_load_dword v{DUM}, v{vMk}, {sr(pWS,2)} sc1", "pt")
    h_loads = [f"global_load_dwordx2 {r(HG,2)}, v{vHG}, {sr(pWS,2)} sc1"]
    if o.bmode == "all":
        e("s_barrier")
        w2load()
        g.vmem(h_loads[0], "hg")
        woload()
        g.stamp("wiss")
        check_retry_fs(g, "h", h_loads, [HG+1], f"s_waitcnt vmcnt({g.cnt('hg')})")
    else:
        e("s_waitcnt vmcnt(%d)" % o.hwait)
        e(h_loads[0])
        check_retry_fs(g, "h", h_loads, [HG+1], "s_waitcnt vmcnt(0)")
    e(f"v_mov_b32 v{T+13}, s{sTAG}\nv_mov_b32 v{T+15}, s{sTAG}")
    xor_reduce(g, HG, T, "add", (4,))
    bf16r(g, HG, HG)
    e(f"""
    v_mul_f32 v{T}, {LOG2E | 0x80000000:#x}, v{HG}
    v_exp_f32 v{T}, v{T}
    s_nop 0
    v_add_f32 v{T}, 1.0, v{T}
    v_rcp_f32 v{T}, v{T}
    s_nop 0
    v_mul_f32 v{HG}, v{HG}, v{T}
    s_nop 1
    v_mov_b32_dpp v{T}, v{HG} quad_perm:[1,0,3,2] row_mask:0xf bank_mask:0xf
    v_cvt_pk_bf16_f32 v{HG}, v{HG}, v{T}
    s_nop 0
    """)
    for n in range(7): e(f"v_readlane_b32 s{sH+n}, v{HG}, {2*n}")
    g.stamp("h")
    def markwait():
        g.c("start the remaining weight loads once the partner attention workgroup is far enough into V")
        if o.mark >= 0: vec_wait(g, "mk", vMk, 64)
        g.vm = []
        g.stamp("mark")
    def ffn2():
        g.wait("w2")
        g.stamp("w2")
        for n in range(7):
            e(f"v_perm_b32 v{WOP+2*n}, v{W2+2*n+1}, v{W2+2*n}, s{sLO}\nv_perm_b32 v{WOP+2*n+1}, v{W2+2*n+1}, v{W2+2*n}, s{sHI}")
        for n in range(7):
            for c in range(2):
                e(f"v_dot2_f32_bf16 v{T+10+c}, v{WOP+2*n+c}, s{sH+n}, {'0' if n == 0 else 'v%d' % (T+10+c)}")
        e(f"s_cmp_lg_u32 s{sW}, 2\ns_nop 1\nds_write_b64 v{vT8}, {r(T+10,2)} offset:{L_B}")
    if o.bmode == "early":
        ffn2()
        e("s_waitcnt lgkmcnt(0)\ns_barrier\ns_cbranch_scc1 L_nob")
        sum4(g, vL8, L_B, 1)
        e(f"global_store_dwordx4 v{vAp}, {r(T+12,4)}, {sr(pWS,2)} sc1\nL_nob:")
        g.stamp("bpub")
        markwait(); woload()
    else:
        if o.bmode == "late": markwait(); w2load(); woload()
        ffn2()
        e(f"s_cselect_b32 s{sCNT}, {L_A-L_B}, 0\nv_add_u32 v{vL8}, s{sCNT}, v{vL8}")
    def woperm(a, b):
        for n in range(a, b):
            e(f"v_perm_b32 v{WOP+2*n}, v{WO+2*n+1}, v{WO+2*n}, s{sLO}\nv_perm_b32 v{WOP+2*n+1}, v{WO+2*n+1}, v{WO+2*n}, s{sHI}")
    ml_loads = [f"global_load_dwordx4 {r(MLG+4*u,4)}, v{vMLG}, {sr(pWS,2)} offset:{64*u} sc1" for u in range(4)]
    o_loads = [f"global_load_dwordx4 {r(OG+4*u,4)}, v{vOG}, {sr(pWS,2)} offset:{1024*u} sc1" for u in range(4)]
    for q in range(4):
        g.wait(f"wo{8*q+7}")
        if q == o.oq:
            for ld in ml_loads: g.vmem(ld, "ml")
            for ld in o_loads: g.vmem(ld, "o")
        woperm(4*q, 4*q+4)
    g.stamp("wo")
    check_retry(g, "ml", ml_loads, [MLG+4*u+k for u in range(4) for k in (1, 3)], f"s_waitcnt vmcnt({g.cnt('ml')})")
    g.stamp("ml")
    M_, L_ = T, T+1
    e(f"""
    v_max3_f32 v{M_}, v{MLG}, v{MLG+4}, v{MLG+8}
    v_max_f32 v{M_}, v{M_}, v{MLG+12}
    """)
    xor_reduce(g, M_, T+2, "max", (5, 4))
    for u in range(4): e(f"v_sub_f32 v{MLG+4*u}, v{MLG+4*u}, v{M_}")
    for u in range(4): e(f"v_mul_f32 v{MLG+4*u}, s{sL2}, v{MLG+4*u}")
    for u in range(4): e(f"v_exp_f32 v{MLG+4*u}, v{MLG+4*u}")
    e(f"v_mul_f32 v{L_}, v{MLG}, v{MLG+2}")
    for u in range(1, 4): e(f"v_fmac_f32 v{L_}, v{MLG+4*u}, v{MLG+4*u+2}")
    xor_reduce(g, L_, T+2, "add", (5, 4))
    e(f"v_rcp_f32 v{L_}, v{L_}")
    g.stamp("wgt")
    check_retry(g, "o", o_loads, [OG+4*u+k for u in range(4) for k in (1, 3)], "s_waitcnt vmcnt(0)")
    g.stamp("ogot")
    a0, a1 = T+2, T+3
    e(f"v_mul_f32 v{a0}, v{MLG}, v{OG}\nv_mul_f32 v{a1}, v{MLG}, v{OG+2}")
    for u in range(1, 4): e(f"v_fmac_f32 v{a0}, v{MLG+4*u}, v{OG+4*u}\nv_fmac_f32 v{a1}, v{MLG+4*u}, v{OG+4*u+2}")
    e(f"""
    s_nop 1
    v_permlane32_swap_b32 v{a0}, v{a1}
    v_add_f32 v{a0}, v{a0}, v{a1}
    v_mov_b32 v{a1}, v{a0}
    s_nop 1
    v_permlane16_swap_b32 v{a0}, v{a1}
    v_add_f32 v{a0}, v{a0}, v{a1}
    v_mul_f32 v{a0}, v{a0}, v{L_}
    v_mul_f32 v{a1}, 1.0, v{a0}
    s_nop 1
    v_permlane32_swap_b32 v{a0}, v{a1}
    v_cvt_pk_bf16_f32 v{a0}, v{a0}, v{a1}
    s_nop 0
    """)
    for n in range(3): e(f"v_readlane_b32 s{S0+n}, v{a0}, {n}")
    for n in range(16):
        if n + 3 < 16: e(f"v_readlane_b32 s{S0+n+3}, v{a0}, {n+3}")
        for c in range(2):
            e(f"v_dot2_f32_bf16 v{T+8+c}, v{WOP+2*n+c}, s{S0+n}, {'0' if n == 0 else 'v%d' % (T+8+c)}")
    e(f"""
    {f"s_cmp_lg_u32 s{sW}, 0" if o.bmode == "early" else f"s_bitcmp1_b32 s{sW}, 0"}
    s_nop 1
    ds_write_b64 v{vT8}, {r(T+8,2)} offset:{L_A}
    s_waitcnt lgkmcnt(0)
    s_barrier
    s_cbranch_scc1 L_out
    """)
    sum4(g, vL8, L_A if o.bmode == "early" else L_B, 1)
    e(f"global_store_dwordx4 v{vAp}, {r(T+12,4)}, {sr(pWS,2)} sc1\ns_mov_b64 exec, 1\nglobal_store_dword v{vAF}, v{VTAG}, {sr(pWS,2)}")
    g.stamp("apub")
    if o.echop:
        e(f"""
        s_cmp_lg_u32 s2, {o.echowg}
        s_cbranch_scc1 L_out
        s_cmp_lg_u32 s{sW}, 0
        s_cbranch_scc1 L_out
        s_memtime s[94:95]
        s_waitcnt lgkmcnt(0)
        s_sub_u32 s90, s90, s92
        s_mul_i32 s90, s90, {o.echok}
        L_echop:
        s_memtime s[96:97]
        s_waitcnt lgkmcnt(0)
        s_sub_u32 s96, s96, s94
        s_cmp_lt_u32 s96, s90
        s_cbranch_scc1 L_echop
        """)
    e("s_branch L_out" if o.stamps else "s_endpgm")
    g.newrole(vm0, nst0)
    cut2 = len(g.lines)
    e("L_att:")
    g.c("prefetch this kernel's code into L2")
    e(f"v_lshlrev_b32 v{T}, 7, v0\nv_cmp_gt_u32 vcc, CODE_BYTES-128, v{T}\ns_and_b64 exec, exec, vcc\ns_cbranch_execz L_nocp\nglobal_load_dword v{DUM}, v{T}, s[{sR}:{sR+1}]\nL_nocp:\ns_mov_b64 exec, -1")
    e(f"""
    s_lshl_b32 s41, s{sG}, 24
    s_lshl_b32 s42, s{sJ}, 16
    s_add_u32 s41, s41, s42
    s_add_u32 s41, s41, 0xF00000
    v_lshl_add_u32 v{vVo}, v{VW}, 14, s41
    v_bfe_u32 v{T+13}, v0, 2, 2
    v_lshl_add_u32 v{T+14}, v{T+13}, 8, v{T+12}
    v_bfe_u32 v{T+15}, v0, 4, 2
    v_lshl_add_u32 v{T+14}, v{T+15}, 6, v{T+14}
    v_add_u32 v{vKo}, v{T+14}, v{vVo}
    v_add_u32 v{vVo}, v{VL16}, v{vVo}
    s_lshl_b32 s{S0}, s{sJ}, 10
    """)
    g.c("each workgroup walks its 16 load slots in a rotated order (spreads the memory channels)")
    for n in range(1, 16):
        e(f"s_add_u32 s{S0+n}, s{S0+n-1}, 1024\ns_and_b32 s{S0+n}, s{S0+n}, 0x3fff")
    e(f"""
    s_lshl_b32 s{sL2}, s{sG}, 7
    s_lshl_b32 s{sL2+1}, s{sJ}, 3
    s_add_u32 s{sL2}, s{sL2}, s{sL2+1}
    s_and_b32 s{sL2+1}, s{sW}, 1
    s_lshl2_add_u32 s{sL2}, s{sL2+1}, s{sL2}
    v_lshrrev_b32 v{T+2}, 3, v0
    v_and_b32 v{T+3}, 7, v0
    v_min_u32 v{T+3}, 6, v{T+3}
    s_mul_i32 s52, s{sJ}, {32*3584}
    s_mul_i32 s53, s{sG}, 448
    s_add_u32 s52, s52, s53
    v_mul_u32_u24 v{T+2}, 3584, v{T+2}
    v_lshl_add_u32 v{T+3}, v{T+3}, 6, s52
    v_add_u32 v{T+2}, v{T+2}, v{T+3}
    s_lshl_b32 s52, s{sG}, 11
    s_lshl_b32 s53, s{sJ}, 7
    s_add_u32 s52, s52, s53
    s_add_u32 s52, s52, {QREC:#x}
    s_lshl_b32 s54, s{sG}, 10
    s_lshr_b32 s53, s53, 1
    s_add_u32 s53, s53, s54
    s_add_u32 s53, s53, {QFLG:#x}
    s_lshl_b32 s54, s{sG}, 12
    s_lshl_b32 s55, s{sJ}, 8
    s_add_u32 s54, s54, s55
    s_add_u32 s54, s54, {HREC:#x}
    s_add_u32 s55, s54, 128
    s_cmp_eq_u32 s{sW}, 1
    s_cselect_b32 s52, s53, s52
    s_cmp_eq_u32 s{sW}, 2
    s_cselect_b32 s52, s54, s52
    s_cmp_eq_u32 s{sW}, 3
    s_cselect_b32 s52, s55, s52
    v_mov_b32 v{T+3}, s52
    s_waitcnt lgkmcnt(0)
    """)
    g.c("bring the partner's q / hint / h lines into this die's L2 ahead of its stores")
    g.vmem(f"global_load_dword v{DUM}, v{T+3}, {sr(pWS,2)} {o.ptpol}", "pt")
    e(f"v_mov_b32 v{vOF}, v{T+2}")
    def w1pf():
        g.c("pull this die's share of w1 into L2 ahead of the key stream")
        g.vmem(f"global_load_dword v{DUM}, v{vOF}, {sr(pW1,2)} {NT}", "pf")
    if o.w1pf == 1: w1pf()
    def kload(n):
        e(f"v_add_u32 v{T+n%2}, s{S0+n}, v{vKo}")
        g.vmem(f"global_load_dwordx4 {r(K+4*n,4)}, v{T+n%2}, {sr(pK,2)} {NT}", f"k{n}")
        if o.gap > 1: e(f"s_nop {o.gap-2}")
    def vload(n):
        e(f"v_add_u32 v{T+n%2}, s{S0+n}, v{vVo}")
        g.vmem(f"global_load_dwordx4 {r(V+4*n,4)}, v{T+n%2}, {sr(pV,2)} {NT}", f"v{n}")
        if o.gap > 1: e(f"s_nop {o.gap-2}")
    for n in range(o.k0): kload(n)
    e(f"""
    s_load_dword s{sTAG}, {sr(pWS,2)}, s{sSC}
    s_load_dword s{sXRES}, {sr(pX,2)}, s{sL2}
    s_mov_b32 s{sSPIN}, {SPIN_LIMIT:#x}
    s_mov_b32 s{sCO}, 1
    s_add_u32 s{pWS2}, s{pWS}, {SDELTA:#x}
    s_addc_u32 s{pWS2+1}, s{pWS+1}, 0
    s_lshl_b32 s52, s{sG}, 11
    s_add_u32 s52, s52, {QREC:#x}
    v_lshl_add_u32 v{vQG}, v{T+14}, 1, s52
    s_lshl_b32 s52, s{sG}, 16
    s_lshl_b32 s53, s{sJ}, 8
    s_add_u32 s52, s52, s53
    v_lshrrev_b32 v{T+2}, 4, v0
    v_and_b32 v{T+3}, 15, v0
    v_lshl_add_u32 v{vOW}, v{T+2}, 12, s52
    v_lshl_add_u32 v{vOW}, v{T+3}, 4, v{vOW}
    v_lshrrev_b32 v{T+2}, 2, v0
    v_lshlrev_b32 v{vOrd}, 4, v{T+2}
    v_bfe_u32 v{T+4}, v0, 1, 1
    v_lshl_add_u32 v{vOrd}, v{T+4}, 10, v{vOrd}
    v_and_b32 v{T+4}, 1, v0
    v_lshl_add_u32 v{vOrd}, v{T+4}, 3, v{vOrd}
    s_lshl_b32 s52, s{sG}, 2
    s_add_u32 s52, s52, s{sW}                 ; head
    s_lshl_b32 s53, s52, 8
    s_lshl_b32 s54, s{sJ}, 4
    s_add_u32 s53, s53, s54
    s_add_u32 s53, s53, {MLREC:#x}
    v_mov_b32 v{vMLp}, s53
    v_lshlrev_b32 v{vMLw}, 5, v{T+13}
    v_lshl_add_u32 v{vMLw}, v{VW}, 3, v{vMLw}
    v_lshlrev_b32 v{vMLr}, 5, v{T+15}
    v_lshl_add_u32 v{vFr}, v{VW}, 3, v{vMLr}
    v_lshl_add_u32 v{vLw}, v{VW}, 11, v{VL16}
    s_and_b32 s53, s2, 127
    s_lshl_b32 s53, s53, 7
    s_add_u32 s53, s53, {MARK:#x}
    v_mov_b32 v{vMkA}, s53
    s_lshl_b32 s53, s{sG}, 7
    s_add_u32 s53, s53, {AFLG:#x}
    v_lshl_add_u32 v{vAFr}, v{T+3}, 2, s53
    s_lshr_b32 s53, s{sL2}, 8
    s_lshl_b32 s53, s53, 15
    s_and_b32 s54, s{sL2}, 255
    s_lshl_b32 s54, s54, 2
    s_add_u32 s53, s53, s54
    s_add_u32 s53, s53, {AREC:#x}
    v_and_b32 v{T+4}, 31, v0
    v_lshl_add_u32 v{vFin}, v{T+4}, 10, s53
    v_bfe_u32 v{T+4}, v0, 5, 1
    v_lshl_add_u32 v{vFin}, v{T+4}, 17, v{vFin}
    v_bfe_u32 v{T+4}, v0, 4, 1
    v_lshl_add_u32 v{vOut}, v{T+4}, 1, s{sL2}
    v_cmp_eq_u32 vcc, 0, v{T+4}
    s_lshl_b32 s{sFOFF}, s{sG}, 10
    s_add_u32 s{sFOFF}, s{sFOFF}, {QFLG:#x}
    s_lshl_b32 s55, s{sW}, 4
    """)
    if not o.adelay:
        for n in range(o.k0, 16): kload(n)
    e(f"""
    s_waitcnt lgkmcnt(0)
    s_lshl_b32 s52, s{sXRES}, 16
    s_and_b32 s53, s{sXRES}, 0xffff0000
    v_mov_b32 v{T+2}, s52
    v_mov_b32 v{T+3}, s53
    v_cndmask_b32 v{vXres}, v{T+3}, v{T+2}, vcc
    s_mov_b32 s{sSC}, {SCALE:#x}
    s_mov_b32 s{sSC+1}, {SCALE:#x}
    s_mov_b32 s{sL2}, {LOG2E:#x}
    s_mov_b32 s{sL2+1}, {LOG2E:#x}
    """)
    if o.adelay:
        g.stamp("ep")
        if o.w1pf == 2: w1pf()
        for n in range(o.k0, 16): kload(n)
    tagcalc(g)
    g.stamp("kiss")
    q_loads = [f"global_load_dwordx4 {r(QG+4*u,4)}, v{vQG}, {sr(pWS,2)} offset:{16*u} sc1" for u in range(2)]
    for n in range(o.v2 + 1):
        if n == o.ptpos:
            g.c("bring the lines this workgroup will write later into this die's L2")
            g.vmem(f"global_load_dword v{DUM}, v{vOW}, {sr(pWS,2)} {o.ptpol}", "pt")
            g.vmem(f"global_load_dword v{DUM}, v{vMLp}, {sr(pWS,2)} {o.ptpol}", "pt")
            if o.tlbout: g.vmem(f"global_load_ushort v{DUM}, v{vOut}, {sr(pOUT,2)}", "pt")
        if n == o.v1:
            g.stamp("fwait")
            if o.qflag:
                flag_wait(g, "qf", VTAGM, sFL)
                if o.stamps: e("s_mov_b32 s84, 0\ns_mov_b32 s86, 0\ns_mov_b32 s88, 0")
            g.stamp("qiss")
            for ld in q_loads: g.vmem(ld, "qg")
            if o.qbar: e("s_barrier")
        if n == o.mark:
            e("s_mov_b64 exec, 1")
            g.vmem(f"global_store_dword v{vMkA}, v{VTAG}, {sr(pWS,2)} sc1", "mk")
            e("s_mov_b64 exec, -1")
        if n < o.v2: vload(n)
    g.stamp("viss")
    def vperm(n, ee):
        d = ee >> 1
        e(f"v_perm_b32 v{(TV0 if n < 4 else V)+4*ee+(n&3)}, v{V+4*(2*n+1)+d}, v{V+4*(2*n)+d}, s{sHI if ee & 1 else sLO}")
    npre = max(0, min(o.v1 // 2 - 1, 7))
    for n in range(npre):
        g.wait(f"v{2*n+1}")
        for ee in range(8): vperm(n, ee)
    check_retry_fs(g, "q", q_loads, [QG+1, QG+3, QG+5, QG+7], f"s_waitcnt vmcnt({g.cnt('qg')})")
    g.stamp("qgot")
    for k in range(4): e(f"v_mov_b32 v{Q+k}, v{QG+2*k}")
    e("s_nop 1")
    for n in range(16): e(f"v_mfma_f32_16x16x32_bf16 {r(K+4*n,4)}, {r(K+4*n,4)}, {r(Q,4)}, 0")
    gap0, o.gap = o.gap, 0
    for n in range(o.v2, o.v3): vload(n)
    for h in range(2):
        for c in range(4):
            for n in range(8*h, 8*h+8):
                if c == 0: e(f"v_mov_b32_dpp v{S+n}, v{K+4*n} quad_perm:[0,0,0,0] row_mask:0xf bank_mask:0xf")
                else: e(f"v_add_f32_dpp v{S+n}, v{K+4*n+c}, v{S+n} quad_perm:[{c},{c},{c},{c}] row_mask:0xf bank_mask:0xf")
    for n in range(8): e(f"v_cvt_pk_bf16_f32 v{T+n}, v{S+2*n}, v{S+2*n+1}")
    for n in range(8): e(f"v_lshlrev_b32 v{S+2*n}, 16, v{T+n}\nv_and_b32 v{S+2*n+1}, 0xffff0000, v{T+n}")
    for n in range(8): e(f"v_pk_mul_f32 {r(S+2*n,2)}, {r(S+2*n,2)}, {sr(sSC,2)}")
    for n in range(8): e(f"v_cvt_pk_bf16_f32 v{T+n}, v{S+2*n}, v{S+2*n+1}")
    for n in range(8): e(f"v_lshlrev_b32 v{S+2*n}, 16, v{T+n}\nv_and_b32 v{S+2*n+1}, 0xffff0000, v{T+n}")
    m, l = T+8, T+9
    for k in range(5): e(f"v_max3_f32 v{T+k}, v{S+3*k}, v{S+3*k+1}, v{S+3*k+2}")
    e(f"v_max3_f32 v{T}, v{T}, v{T+1}, v{T+2}\nv_max3_f32 v{T+3}, v{T+3}, v{T+4}, v{S+15}\nv_max_f32 v{m}, v{T}, v{T+3}")
    xor_reduce(g, m, T, "max", (5, 4))
    for n in range(8): e(f"v_pk_add_f32 {r(S+2*n,2)}, {r(S+2*n,2)}, {r(m,2)} op_sel_hi:[1,0] neg_lo:[0,1] neg_hi:[0,1]")
    for n in range(8): e(f"v_pk_mul_f32 {r(S+2*n,2)}, {r(S+2*n,2)}, {sr(sL2,2)}")
    for k in range(16): e(f"v_exp_f32 v{S+k}, v{S+k}")
    for n in range(4): e(f"v_pk_add_f32 {r(T+2*n,2)}, {r(S+4*n,2)}, {r(S+4*n+2,2)}")
    e(f"""
    v_pk_add_f32 {r(T,2)}, {r(T,2)}, {r(T+2,2)}
    v_pk_add_f32 {r(T+4,2)}, {r(T+4,2)}, {r(T+6,2)}
    v_pk_add_f32 {r(T,2)}, {r(T,2)}, {r(T+4,2)}
    v_add_f32 v{l}, v{T}, v{T+1}
    v_mov_b32 v{T}, v{l}
    v_cvt_pk_bf16_f32 v{P8}, v{S}, v{S+1}
    v_cvt_pk_bf16_f32 v{P8+1}, v{S+2}, v{S+3}
    v_permlane32_swap_b32 v{l}, v{T}
    v_add_f32 v{l}, v{l}, v{T}
    v_mov_b32 v{T}, v{l}
    v_cvt_pk_bf16_f32 v{P8+2}, v{S+4}, v{S+5}
    v_cvt_pk_bf16_f32 v{P8+3}, v{S+6}, v{S+7}
    v_permlane16_swap_b32 v{l}, v{T}
    v_add_f32 v{l}, v{l}, v{T}
    s_mov_b64 exec, 0x1111
    ds_write_b64 v{vMLw}, {r(m,2)} offset:{L_ML}
    s_mov_b64 exec, -1
    """)
    for n in range(4, 8): e(f"v_cvt_pk_bf16_f32 v{P8+n}, v{S+2*n}, v{S+2*n+1}")
    g.stamp("p")
    for n in range(max(o.v2, o.v3), 16): vload(n)
    e(f"""
    s_waitcnt lgkmcnt(0)
    s_barrier
    ds_read_b128 {r(T,4)}, v{vMLr} offset:{L_ML}
    ds_read_b128 {r(T+4,4)}, v{vMLr} offset:{L_ML+16}
    ds_read_b32 v{vFr}, v{vFr} offset:{L_ML}
    """)
    if npre < 7:
        g.wait(f"v{2*npre+1}")
        for ee in range(8): vperm(npre, ee)
        npre += 1
    e(f"""
    s_waitcnt lgkmcnt(0)
    v_max3_f32 v{T+12}, v{T}, v{T+2}, v{T+4}
    v_max_f32 v{T+12}, v{T+12}, v{T+6}
    v_sub_f32 v{vFr}, v{vFr}, v{T+12}
    v_sub_f32 v{T}, v{T}, v{T+12}
    v_sub_f32 v{T+2}, v{T+2}, v{T+12}
    v_sub_f32 v{T+4}, v{T+4}, v{T+12}
    v_sub_f32 v{T+6}, v{T+6}, v{T+12}
    v_mul_f32 v{vFr}, s{sL2}, v{vFr}
    v_mul_f32 v{T}, s{sL2}, v{T}
    v_mul_f32 v{T+2}, s{sL2}, v{T+2}
    v_mul_f32 v{T+4}, s{sL2}, v{T+4}
    v_mul_f32 v{T+6}, s{sL2}, v{T+6}
    v_exp_f32 v{vFr}, v{vFr}
    v_exp_f32 v{T}, v{T}
    v_exp_f32 v{T+2}, v{T+2}
    v_exp_f32 v{T+4}, v{T+4}
    v_exp_f32 v{T+6}, v{T+6}
    v_mul_f32 v{T+14}, v{T}, v{T+1}
    v_fmac_f32 v{T+14}, v{T+2}, v{T+3}
    v_fmac_f32 v{T+14}, v{T+4}, v{T+5}
    v_fmac_f32 v{T+14}, v{T+6}, v{T+7}
    v_mov_b32 v{T+13}, s{sTAG}
    v_mov_b32 v{T+15}, s{sTAG}
    s_lshl_b64 exec, 1, s55
    """)
    fs_store(g, [(f"global_store_dwordx4 v{vMLp}, {r(T+12,4)}, {sr(pWS,2)}", True)], "mlpub")
    e("s_mov_b64 exec, -1")
    g.stamp("mlp")
    def pv(b, ee): e(f"v_mfma_f32_16x16x32_bf16 {r(DA+4*ee,4)}, {r(P8+4*b,4)}, {r((TV0 if b == 0 else V)+4*ee,4)}, {'0' if b == 0 else r(DA+4*ee,4)}")
    def sc(ee): e(f"v_mul_f32 v{OUT+ee}, v{DA+4*ee}, v{vFr}")
    if npre >= 4:
        for ee in range(8): pv(0, ee)
    for n in range(npre, 7):
        g.wait(f"v{2*n+1}")
        for ee in range(8): vperm(n, ee)
        if n == 3:
            for ee in range(8): pv(0, ee)
    g.wait("v15")
    g.stamp("v")
    for ee in range(3): vperm(7, ee)
    for ee in range(8):
        pv(1, ee)
        if ee + 3 < 8: vperm(7, ee + 3)
        if ee >= 5: sc(ee - 5)
    sc(3)
    e(f"ds_write_b128 v{vLw}, {r(OUT,4)} offset:{L_O}")
    sc(4); e("s_nop 0"); sc(5); e("s_nop 0"); sc(6); e("s_nop 0"); sc(7)
    e(f"""
    ds_write_b128 v{vLw}, {r(OUT+4,4)} offset:{L_O+1024}
    s_waitcnt lgkmcnt(0)
    s_barrier
    """)
    sum4(g, vOrd, L_O, 4)
    fs_store(g, [(f"global_store_dwordx4 v{vOW}, {r(T+12,4)}, {sr(pWS,2)}", True)], "opub")
    g.stamp("opub")
    e(f"s_cmp_ge_u32 s{sW}, 2\ns_cbranch_scc1 L_out")
    g.c("final reduction of two output columns per wave: lanes 0-31 attention partials, lanes 32-63 FFN partials")
    if o.agate: vec_wait(g, "af", vAFr, 64)
    g.stamp("agate")
    f_loads = [f"global_load_dwordx4 {r(T+8,4)}, v{vFin}, {sr(pWS,2)} sc1"]
    e(f_loads[0])
    check_retry(g, "a", f_loads, [T+9, T+11], "s_waitcnt vmcnt(0)")
    g.stamp("agot")
    e(f"""
    s_nop 1
    v_permlane16_swap_b32 v{T+8}, v{T+10}
    v_add_f32 v{T+1}, v{T+8}, v{T+10}
    """)
    for c in (8, 4, 2, 1):
        e("s_nop 1"); dpp(g, T+1, f"row_ror:{c} row_mask:0xf")
    g.c("rows 0/1 hold A of the two columns, rows 2/3 hold B")
    bf16r(g, T+1, T+1)
    e(f"v_mov_b32 v{T}, v{T+1}\ns_nop 1\nv_permlane32_swap_b32 v{T+1}, v{T}\nv_add_f32 v{T+1}, v{vXres}, v{T+1}")
    bf16r(g, T+1, T+1)
    e(f"""
    v_add_f32 v{T+1}, v{T+1}, v{T}
    v_cvt_pk_bf16_f32 v{T+1}, v{T+1}, v{T+1}
    s_mov_b64 exec, 0x10001
    global_store_short v{vOut}, v{T+1}, {sr(pOUT,2)} {o.outpol}
    s_cmp_lg_u32 s2, {o.epwg}
    s_cbranch_scc1 L_out
    v_mov_b32 v{T+2}, {EPOCH:#x}
    global_store_dword v{T+2}, v{VTAG}, {sr(pWS,2)} sc1
    """)
    g.stamp("fin")
    if o.echo and not o.echop:
        clk = "s_memtime" if o.echom in ("cyc", "fix") else "s_memrealtime"
        e(f"""
        {clk} s[94:95]
        s_waitcnt lgkmcnt(0)
        s_sub_u32 s90, s90, s92
        s_mul_i32 s90, s90, {o.echok}
        {"s_lshr_b32 s90, s90, 4" if o.echom == "c2r" else f"s_mov_b32 s90, {o.echok}" if o.echom == "fix" else ""}
        L_echo:
        {clk} s[96:97]
        s_waitcnt lgkmcnt(0)
        s_sub_u32 s96, s96, s94
        s_cmp_lt_u32 s96, s90
        s_cbranch_scc1 L_echo
        """)
    e("s_branch L_out" if o.stamps else "s_endpgm")
    cut3 = len(g.lines)
    g.lines = g.lines[:cut1] + g.lines[cut2:cut3] + g.lines[cut1:cut2]
    g.newrole([], 0)
    e("L_out:")
    if o.stamps:
        e(f"""
        s_mov_b64 exec, -1
        s_waitcnt vmcnt(0)
        s_memtime s[98:99]
        s_memrealtime s[46:47]
        v_mov_b32 v{VST}, 0
        s_waitcnt lgkmcnt(0)
        """)
        for k in range(g.maxst): e(f"v_writelane_b32 v{VST}, s{sST+2*k}, {k}")
        e(f"""
        v_writelane_b32 v{VST}, s98, 61
        v_writelane_b32 v{VST}, s100, 62
        v_writelane_b32 v{VST}, s46, 63
        v_writelane_b32 v{VST}, s{sSPIN}, 59
        v_writelane_b32 v{VST}, s{sCO}, 60
        v_writelane_b32 v{VST}, s97, 58
        s_lshl_b32 s45, s2, 10
        s_add_u32 s45, s45, {STAMPS:#x}
        v_lshl_add_u32 v{T}, v0, 2, s45
        global_store_dword v{T}, v{VST}, {sr(pWS,2)}
        """)
    e("L_end:\ns_endpgm")
    for t in g.tail: e(t)
    e("L_code_end:")
    if o.stamps:
        assert sST + 2*g.maxst <= 96, g.maxst
        z = [f"    s_mov_b32 s{sST+2*k}, 0" for k in range(1, g.maxst)]
        g.lines[3:3] = z
    return g

HEADER = open(f"cdna_kernels/{NAME}.s.ref").read().split("; Override launch geometry")[0]

def emit(o, path):
    global sFL
    sFL = 80 if o.stamps else 64
    g = build(o)
    errs = hazard.check(g.lines)
    for x in errs: print(x, file=sys.stderr)
    txt = HEADER
    txt += f"; @launch grid=(256,1,1) block=(256,1,1) lds={LDS_BYTES}\n"
    txt += f'.amdgcn_target "amdgcn-amd-amdhsa--gfx950"\n.text\n.globl {NAME}_kernel\n.p2align 12\n.type {NAME}_kernel,@function\n'
    txt += f".set CODE_BYTES, L_code_end - {NAME}_kernel\n"
    txt += "\n".join(g.lines) + "\n"
    txt += f'''.section .rodata,"a"
.p2align 6
.amdhsa_kernel {NAME}_kernel
  .amdhsa_next_free_vgpr {NVGPR}
  .amdhsa_next_free_sgpr {102 if (o.stamps or o.echo) else 80}
  .amdhsa_accum_offset {NVGPR}
  .amdhsa_group_segment_fixed_size 0
  .amdhsa_kernarg_size 88
  .amdhsa_user_sgpr_count 2
  .amdhsa_user_sgpr_kernarg_segment_ptr 1
  .amdhsa_system_sgpr_workgroup_id_x 1
  .amdhsa_float_denorm_mode_32 3
  .amdhsa_float_denorm_mode_16_64 3
.end_amdhsa_kernel
'''
    open(path, "w").write(txt)
    if o.stamps: open(path + ".names", "w").write("WG\n" + "\n".join(" ".join(n) for n in g.allnames))
    return len(errs)

if __name__ == "__main__":
    ap = argparse.ArgumentParser()
    ap.add_argument("out")
    ap.add_argument("--stamps", action="store_true")
    ap.add_argument("--echo", default="")
    ap.add_argument("--echop", type=int, default=0)
    ap.add_argument("--echowg", type=int, default=0)
    ap.add_argument("--echom", default="cyc")
    ap.add_argument("--epwg", type=int, default=128)
    ap.add_argument("--echok", type=int, default=4)
    ap.add_argument("--outpol", default="")
    ap.add_argument("--ptpol", default="nt")
    ap.add_argument("--ptpos", type=int, default=0)
    ap.add_argument("--ptab", type=int, default=1)
    ap.add_argument("--tlbout", type=int, default=1)
    ap.add_argument("--gap", type=int, default=4)
    ap.add_argument("--gapq", type=int, default=2)
    ap.add_argument("--v1", type=int, default=4)
    ap.add_argument("--qflag", type=int, default=1)
    ap.add_argument("--qbar", type=int, default=0)
    ap.add_argument("--oq", type=int, default=2)
    ap.add_argument("--owait", default="")
    ap.add_argument("--mark", type=int, default=8)
    ap.add_argument("--bmode", default="early")
    ap.add_argument("--wqpol", default="nt")
    ap.add_argument("--qb4", type=int, default=1)
    ap.add_argument("--k0", type=int, default=0)
    ap.add_argument("--adelay", type=int, default=1)
    ap.add_argument("--q2pos", type=int, default=0)
    ap.add_argument("--w1pos", type=int, default=1)
    ap.add_argument("--w1pf", type=int, default=1)
    ap.add_argument("--hwait", type=int, default=8)
    ap.add_argument("--fine", type=int, default=0)
    ap.add_argument("--s0", type=int, default=1)
    ap.add_argument("--cpf", type=int, default=1)
    ap.add_argument("--vpf", type=int, default=8)
    ap.add_argument("--vpfpos", type=int, default=1)
    ap.add_argument("--v2", type=int, default=16)
    ap.add_argument("--v3", type=int, default=16)
    ap.add_argument("--agate", type=int, default=1)
    o = ap.parse_args()
    import os
    if emit(o, o.out):
        os.remove(o.out); sys.exit(1)
```

```python
import sys, struct, argparse
sys.path.insert(0, "gen")
import hazard

NAME = "parallel_sum__sliding_block_cached__dense_activation_silu__decode"
def f2u(x): return struct.unpack("<I", struct.pack("<f", x))[0]
LOG2E = f2u(1.4426950408889634); SCALE = f2u(128 ** -0.5); EPS = f2u(1e-5)

OREC, AREC, BREC, QREC, HREC = 0x0, 0x80000, 0xA0000, 0xC0000, 0xC4000
SDELTA = 0x10000
MLREC, QFLG, OFLG, AFLG, MARK, EPOCH = 0xE0000, 0xE2000, 0xE4000, 0xEC000, 0xEE000, 0xF8000
NREP = 16
STAMPS = 0x400000
L_RED, L_RH, L_ML, L_O, L_B, L_A = 0, 512, 1024, 2048, 2048, 4096
LDS_BYTES = 10240
SPIN_LIMIT = 0x40000

class G:
    def __init__(s, opt):
        s.o = opt; s.lines = []; s.vm = []; s.nst = 0; s.lab = 0; s.names = []; s.tail = []; s.allnames = []; s.maxst = 0
    def e(s, t):
        for ln in t.strip("\n").split("\n"):
            if not ln.strip(): continue
            s.lines.append("    " + ln.strip() if not ln.strip().endswith(":") else ln.strip())
    def c(s, t): s.lines.append("    ; " + t)
    def vmem(s, t, name):
        s.e(t); s.vm.append(name)
    def cnt(s, name):
        idx = max(k for k, n in enumerate(s.vm) if n == name)
        n = len(s.vm) - 1 - idx
        assert n < 64
        return n
    def wait(s, name, extra=""):
        s.e(f"s_waitcnt vmcnt({s.cnt(name)}) {extra}".strip())
    def stamp(s, label=""):
        if s.o.echo == label: s.e("s_memrealtime s[90:91]" if s.o.echom == "rt" else "s_memtime s[90:91]")
        if not s.o.stamps: return
        if s.o.fine and label in ("w2","bpub","mark","wgt","wo","h"): return
        k = s.nst; s.nst += 1; s.maxst = max(s.maxst, s.nst)
        s.e(f"s_memtime s[{sST+2*k}:{sST+2*k+1}]")
        s.names.append(label)
    def newrole(s, vm, nst):
        s.allnames.append(s.names); s.names = s.names[:nst]; s.nst = nst; s.vm = list(vm)
    def label(s, base):
        s.lab += 1; return f"L_{base}_{s.lab}"

def r(b, n=1): return f"v{b}" if n == 1 else f"v[{b}:{b+n-1}]"
def sr(b, n=1): return f"s{b}" if n == 1 else f"s[{b}:{b+n-1}]"

TID, VL, VL16, VTAG = 0, 1, 2, 3
T = 4
DUM, VTAGM, VW, VST = 20, 21, 22, 23
X8, XQ, XH, HG = 24, 28, 32, 34
WQ = 36
W1 = 68
AQ = 84
W2 = 36
WO = 52
WOP = 92
MLG, OG = 124, 140
vWQ, vW1, vW2o, vWOo, vPub, vHp, vRedW, vOG, vMLG, vL8, vT8, vHG, vPT, vAp, vMk, vAF, vWQ2, vW1b, vVpf, vVpf2 = range(156, 176)
K, V = 24, 88
TV0 = 208
S = 152
DA = 152
QG = 168
Q = 176
P8 = 184
OUT = 24
vKo, vVo, vOW, vQG, vOrd, vFr, vMLr, vMLw, vLw, vOF, vFin, vOut, vXres, vAFr, vMkA, vMLp = range(192, 208)
NVGPR = 240
pX, pK, pV, pWQ, pWO, pW1, pW2, pOUT, pWS = 4, 6, 8, 10, 12, 16, 18, 20, 24
sG, sJ, sW, sTAG, sLO, sHI = 26, 27, 28, 29, 30, 31
sR, sSPIN, sXRES = 22, 14, 15
S0 = 32
sSC, sL2 = 48, 50
sH = 52
sXCC, sCO, sCNT, sFOFF = 59, 3, 0, 1
pWS2, pWSX = 60, 62
sST = 64

def dpp(g, v, ctrl, op="add"):
    g.e(f"v_{op}_f32_dpp v{v}, v{v}, v{v} {ctrl} bank_mask:0xf")
def wave_sum_to_sgpr(g, v, sd):
    for c in ("row_ror:8 row_mask:0xf", "row_ror:4 row_mask:0xf", "row_ror:2 row_mask:0xf", "row_ror:1 row_mask:0xf",
              "row_bcast:15 row_mask:0xa", "row_bcast:31 row_mask:0xc"):
        g.e("s_nop 1"); dpp(g, v, c)
    g.e(f"s_nop 0\nv_readlane_b32 s{sd}, v{v}, 63\ns_nop 1")
def bf16r(g, d, s_):
    g.e(f"v_cvt_pk_bf16_f32 v{d}, v{s_}, v{s_}\nv_lshlrev_b32 v{d}, 16, v{d}")
def xor_reduce(g, v, t, op, bits):
    for b in bits:
        sw = "v_permlane32_swap_b32" if b == 5 else "v_permlane16_swap_b32"
        g.e(f"v_mov_b32 v{t}, v{v}\ns_nop 1\n{sw} v{v}, v{t}\nv_{op}_f32 v{v}, v{v}, v{t}")

def check_retry(g, name, loads, tags, first_wait):
    slow, ok = g.label(name + "s"), g.label(name + "k")
    g.e(first_wait)
    for t in tags: g.e(f"v_cmpx_eq_u32 vcc, v{VTAG}, v{t}")
    g.e(f"s_andn2_b64 s[{sR}:{sR+1}], -1, exec\ns_cbranch_scc1 {slow}\n{ok}:")
    t_ = [f"{slow}:\ns_sub_u32 s{sSPIN}, s{sSPIN}, 1\ns_cbranch_scc1 L_end\ns_mov_b64 exec, s[{sR}:{sR+1}]"] + loads + ["s_waitcnt vmcnt(0)"]
    t_ += [f"v_cmpx_eq_u32 vcc, v{VTAG}, v{t}" for t in tags]
    t_.append(f"s_andn2_b64 s[{sR}:{sR+1}], s[{sR}:{sR+1}], exec\ns_cbranch_scc1 {slow}\ns_mov_b64 exec, -1\ns_branch {ok}")
    g.tail += t_

def check_retry_fs(g, name, loads, tags, first_wait):
    slow, lp, ok = g.label(name + "s"), g.label(name + "l"), g.label(name + "k")
    g.e(first_wait)
    for t in tags: g.e(f"v_cmpx_eq_u32 vcc, v{VTAGM}, v{t}")
    g.e(f"s_andn2_b64 s[{sR}:{sR+1}], -1, exec\ns_cbranch_scc1 {slow}\n{ok}:")
    t_ = [f"{slow}:\ns_mov_b32 s{sCNT}, 0\n{lp}:",
          f"s_sub_u32 s{sSPIN}, s{sSPIN}, 1\ns_cbranch_scc1 L_end",
          f"s_add_u32 s{sCNT}, s{sCNT}, 1\ns_and_b32 s{pWSX}, s{sCNT}, 3\ns_cmp_eq_u32 s{pWSX}, 3",
          f"s_cselect_b32 s{pWSX}, s{pWS2}, s{pWS}\ns_cselect_b32 s{pWSX+1}, s{pWS2+1}, s{pWS+1}",
          f"s_mov_b64 exec, s[{sR}:{sR+1}]"]
    t_ += [l.replace(sr(pWS,2), sr(pWSX,2)) for l in loads]
    t_.append("s_waitcnt vmcnt(0)")
    for t in tags: t_.append(f"v_xor_b32 v{T}, v{VTAG}, v{t}\nv_cmpx_gt_u32 vcc, 16, v{T}")
    t_.append(f"s_mov_b64 s[56:57], exec")
    for t in tags: t_.append(f"v_cmpx_eq_u32 vcc, v{VTAGM}, v{t}")
    t_.append(f"s_cmp_eq_u64 s[56:57], exec\ns_cselect_b32 s{sCO}, s{sCO}, 0")
    t_.append(f"s_andn2_b64 s[{sR}:{sR+1}], s[{sR}:{sR+1}], s[56:57]\ns_cbranch_scc1 {lp}\ns_mov_b64 exec, -1\ns_branch {ok}")
    g.tail += t_

def fs_store(g, texts, name):
    sl, bk = g.label("st"), g.label("stb")
    g.e(f"s_cmp_eq_u32 s{sCO}, 0\ns_cbranch_scc1 {sl}")
    for t, st in texts:
        if st: g.vmem(t, name)
        else: g.e(t)
    g.e(f"{bk}:")
    g.tail.append(f"{sl}:\n" + "\n".join(t + (" sc1" if st else "") for t, st in texts) + f"\ns_branch {bk}")

def flag_wait(g, name, vt, sdst):
    lp, ok = g.label(name), g.label(name + "k")
    g.e(f"s_mov_b32 s{sCNT}, {NREP}\n{lp}:\ns_load_dwordx16 {sr(sdst,16)}, {sr(pWS,2)}, s{sFOFF}\ns_mov_b64 exec, -1\ns_add_u32 s{sFOFF}, s{sFOFF}, 64\ns_sub_u32 s{sCNT}, s{sCNT}, 1\ns_cmp_eq_u32 s{sCNT}, 0\ns_waitcnt lgkmcnt(0)\ns_cbranch_scc1 {ok}")
    for k in range(16): g.e(f"v_cmpx_eq_u32 vcc, s{sdst+k}, v{vt}")
    g.e(f"s_cbranch_execz {lp}\n{ok}:")
    if g.o.stamps: g.e(f"s_mov_b32 s97, s{sCNT}")

def vec_wait(g, name, addr, limit):
    lp, ok = g.label(name), g.label(name + "k")
    g.e(f"""
    s_mov_b32 s{sCNT}, {limit}
    {lp}:
    global_load_dword v{DUM}, v{addr}, {sr(pWS,2)} sc1
    s_sub_u32 s{sCNT}, s{sCNT}, 1
    s_cbranch_scc1 {ok}
    s_waitcnt vmcnt(0)
    v_cmp_ne_u32 vcc, v{VTAG}, v{DUM}
    s_cbranch_vccnz {lp}
    {ok}:
    """)
    g.vm = ["x"] * 0

def tagcalc(g):
    g.e(f"""
    s_mul_i32 s{sTAG}, s{sTAG}, 0x9E3779B1
    s_add_u32 s{sTAG}, s{sTAG}, 0x7F4A7C15
    s_xor_b32 s{sXCC}, s{sXCC}, s{sTAG}
    v_mov_b32 v{VTAG}, s{sTAG}
    v_mov_b32 v{VTAGM}, s{sXCC}
    """)

def sum4(g, addr, base, stride512):
    b = base // 512
    g.e(f"""
    ds_read2st64_b64 {r(T,4)}, v{addr} offset0:{b} offset1:{b+stride512}
    ds_read2st64_b64 {r(T+4,4)}, v{addr} offset0:{b+2*stride512} offset1:{b+3*stride512}
    s_waitcnt lgkmcnt(0)
    v_pk_add_f32 {r(T,2)}, {r(T,2)}, {r(T+2,2)}
    v_pk_add_f32 {r(T+4,2)}, {r(T+4,2)}, {r(T+6,2)}
    v_add_f32 v{T+12}, v{T}, v{T+4}
    v_add_f32 v{T+14}, v{T+1}, v{T+5}
    """)

def build(o):
    g = G(o); e = g.e
    NT = "nt"
    e(f"{NAME}_kernel:")
    e("s_cmp_ge_u32 s2, 256\ns_cbranch_scc1 L_end")
    e("s_load_dwordx16 s[4:19], s[0:1], 0\ns_load_dwordx2 s[20:21], s[0:1], 64\ns_load_dwordx2 s[24:25], s[0:1], 80")
    if o.echo: e("s_memrealtime s[92:93]" if o.echom == "rt" else "s_memtime s[92:93]")
    if o.stamps:
        e(f"s_memrealtime s[100:101]"); g.stamp("start")
    e(f"v_lshrrev_b32 v{VW}, 6, v0\ns_getpc_b64 s[{sR}:{sR+1}]")
    e(f"""
    v_readfirstlane_b32 s{sW}, v{VW}
    v_and_b32 v{VL}, 63, v0
    s_and_b32 s{sG}, s2, 7
    s_bfe_u32 s{sJ}, s2, 0x40003
    v_lshlrev_b32 v{VL16}, 4, v{VL}
    s_getreg_b32 s{sXCC}, hwreg(HW_REG_XCC_ID)
    s_mov_b32 s{sLO}, 0x05040100
    s_mov_b32 s{sHI}, 0x07060302
    s_mov_b32 s{sSC}, {EPOCH:#x}
    v_and_b32 v{T+12}, 3, v0
    v_lshlrev_b32 v{T+12}, 4, v{T+12}
    s_and_b32 s{sXCC}, s{sXCC}, 15
    s_cmp_ge_u32 s2, 128
    s_cbranch_scc1 L_att
    """)
    vm0, nst0 = list(g.vm), g.nst
    e(f"""
    v_lshrrev_b32 v{T+10}, 2, v0
    s_and_b32 s37, s{sJ}, 1
    s_lshl_b32 s38, s37, 3
    v_lshl_add_u32 v{T+3}, v{T+10}, 4, s38
    v_xor_b32 v{T+6}, 8, v{T+3}
    s_lshl_b32 s37, s37, 15
    s_min_u32 s32, s{sJ}, 13
    s_lshr_b32 s33, s32, 1
    s_and_b32 s34, s32, 1
    s_lshl_b32 s35, s34, 9
    v_lshl_add_u32 v{T+4}, v{T+10}, 3, s35    ; x slice (h)
    s_lshl_b32 s35, s{sG}, 10
    s_lshl_b32 s36, s{sJ}, 6
    s_add_u32 s35, s35, s36
    s_add_u32 s35, s35, s37
    v_lshl_add_u32 v{vWQ}, v{T+10}, 16, s35
    v_add_u32 v{vWQ}, v{T+12}, v{vWQ}
    v_xor_b32 v{vWQ2}, 0x8000, v{vWQ}
    s_lshl_b32 s35, s{sG}, 11
    s_lshl_b32 s36, s{sJ}, 7
    s_add_u32 s35, s35, s36
    s_add_u32 s35, s35, {QREC:#x}
    v_lshl_add_u32 v{vPub}, v{VL}, 3, s35
    s_lshl_b32 s35, s{sG}, 10
    s_lshl_b32 s36, s{sJ}, 2
    s_add_u32 s35, s35, s36
    s_add_u32 s35, s35, {QFLG-16*64:#x}
    v_lshl_add_u32 v{T+5}, v{VL}, 6, s35
    v_cmp_lt_u32 vcc, 15, v{VL}
    s_lshl_b32 s35, s{sG}, 12
    s_lshl_b32 s36, s32, 8
    s_add_u32 s35, s35, s36
    s_add_u32 s35, s35, {HREC-32*16:#x}
    v_cndmask_b32 v{vPub}, v{vPub}, v{T+5}, vcc
    v_add_u32 v{T+5}, s35, v{VL16}
    v_cmp_lt_u32 vcc, 31, v{VL}
    s_nop 1
    v_cndmask_b32 v{vPub}, v{vPub}, v{T+5}, vcc
    s_waitcnt lgkmcnt(0)
    """)
    g.stamp("karg")
    g.vmem(f"global_load_dwordx4 {r(X8,4)}, v{VL16}, {sr(pX,2)}", "x")
    g.vmem(f"global_load_dwordx2 {r(XQ,2)}, v{T+3}, {sr(pX,2)}", "x")
    g.vmem(f"global_load_dwordx2 {r(XQ+2,2)}, v{T+6}, {sr(pX,2)}", "x")
    g.vmem(f"global_load_dwordx2 {r(XH,2)}, v{T+4}, {sr(pX,2)}", "x")
    if o.s0: e("s_barrier")
    def wqload(u0, u1):
        for u in range(u0, u1):
            va = vWQ if u < 4 else vWQ2
            g.vmem(f"global_load_dwordx4 {r(WQ+4*u,4)}, v{va}, {sr(pWQ,2)} {o.wpol}", f"wq{u}")
            if u & 3 != 3: e(f"v_add_u32 v{va}, 0x2000, v{va}")
            if o.gapq: e(f"s_nop {o.gapq-1}")
    wqload(0, 4)
    e(f"s_load_dword s{sTAG}, {sr(pWS,2)}, s{sSC}")
    e("s_branch L_proj2")
    cut1 = len(g.lines)
    e("L_proj2:")
    e(f"""
    s_mov_b32 s{sSPIN}, {SPIN_LIMIT:#x}
    s_add_u32 s{pWS2}, s{pWS}, {SDELTA:#x}
    s_addc_u32 s{pWS2+1}, s{pWS+1}, 0
    s_mul_i32 s35, s34, {256*3584}
    s_mul_i32 s36, s{sG}, 448
    s_add_u32 s35, s35, s36
    s_lshl_b32 s36, s33, 6
    s_add_u32 s35, s35, s36
    v_mul_u32_u24 v{vW1}, {4*3584}, v{T+10}
    v_add3_u32 v{vW1}, v{vW1}, v{T+12}, s35
    s_lshr_b32 s37, s{sJ}, 2                  ; head in group / w2 row block
    s_and_b32 s38, s{sJ}, 3                   ; column quarter
    s_lshl_b32 s39, s{sG}, 2
    s_add_u32 s39, s39, s37                   ; p = 4g + (j>>2)
    s_lshl_b32 s40, s38, 8
    s_add_u32 s40, s40, 4096
    v_lshl_add_u32 v{T+3}, v{VL}, 2, s40
    s_mul_i32 s35, s39, {56*1024}
    v_mul_u32_u24 v{vW2o}, {14*1024}, v{VW}
    v_add3_u32 v{vW2o}, v{vW2o}, v{T+3}, s35
    s_lshl_b32 s35, s39, 17
    v_lshl_add_u32 v{vWOo}, v{VW}, 15, v{T+3}
    v_add_u32 v{vWOo}, s35, v{vWOo}
    s_lshl_b32 s35, s38, 15
    s_lshl_b32 s36, s39, 10
    s_add_u32 s35, s35, s36
    s_add_u32 s35, s35, {AREC:#x}
    s_add_u32 s36, s35, {BREC-AREC:#x}
    s_cmp_lt_u32 s{sW}, 2
    s_cselect_b32 s35, s35, s36
    v_add_u32 v{vAp}, s35, v{VL16}
    v_and_b32 v{T+4}, 127, v0
    v_lshl_add_u32 v{vPT}, v{T+4}, 3, s35
    v_and_b32 v{T+4}, 15, v0
    v_min_u32 v{T+4}, 13, v{T+4}
    s_mul_i32 s35, s37, 56
    s_mul_i32 s36, s{sW}, 14
    s_add_u32 s35, s35, s36
    v_add_u32 v{T+4}, s35, v{T+4}
    v_lshrrev_b32 v{T+5}, 5, v{T+4}
    v_and_b32 v{T+4}, 31, v{T+4}
    s_lshl_b32 s35, s{sG}, 12
    s_add_u32 s35, s35, {HREC:#x}
    v_lshl_add_u32 v{vHG}, v{T+5}, 9, s35
    v_lshl_add_u32 v{vHG}, v{T+4}, 3, v{vHG}
    v_bfe_u32 v{T+4}, v0, 4, 1
    v_lshl_add_u32 v{vHG}, v{T+4}, 8, v{vHG}
    v_lshlrev_b32 v{vRedW}, 1, v{T+12}
    v_lshl_add_u32 v{vRedW}, v{T+4}, 3, v{vRedW}
    v_bfe_u32 v{T+4}, v0, 5, 1
    v_lshl_add_u32 v{vRedW}, v{T+4}, 2, v{vRedW}
    v_lshl_add_u32 v{vRedW}, v{VW}, 7, v{vRedW}
    s_lshl_b32 s35, s39, 14
    v_lshl_add_u32 v{vOG}, v{VW}, 12, s35
    v_add_u32 v{vOG}, v{VL16}, v{vOG}
    s_lshl_b32 s35, s39, 8
    s_add_u32 s35, s35, {MLREC:#x}
    v_and_b32 v{T+4}, 48, v0
    v_add_u32 v{vMLG}, s35, v{T+4}
    v_lshlrev_b32 v{vL8}, 3, v{VL}
    v_lshlrev_b32 v{vT8}, 3, v0
    v_and_b32 v{T+4}, 15, v0
    v_lshlrev_b32 v{vHp}, 3, v{T+4}
    s_and_b32 s35, s2, 127
    s_lshl_b32 s35, s35, 7
    s_add_u32 s35, s35, {MARK:#x}
    v_mov_b32 v{vMk}, s35
    s_lshl_b32 s35, s{sG}, 7
    s_lshl_b32 s36, s{sJ}, 2
    s_add_u32 s35, s35, s36
    s_add_u32 s35, s35, {AFLG:#x}
    v_mov_b32 v{vAF}, s35
    s_mov_b32 s{sL2}, {LOG2E:#x}
    s_lshl_b32 s35, s{sG}, 24
    s_lshl_b32 s36, s{sJ}, 16
    s_add_u32 s35, s35, s36
    s_add_u32 s35, s35, 0xF00000
    s_add_u32 s36, s{sJ}, 8
    s_lshl_b32 s36, s36, 10
    v_lshl_add_u32 v{vVpf}, v{VL}, 7, s36
    v_and_b32 v{vVpf}, 0x3fff, v{vVpf}
    v_lshl_add_u32 v{T+4}, v{VW}, 14, s35
    v_xor_b32 v{vVpf2}, 0x2000, v{vVpf}
    v_add_u32 v{vVpf}, v{T+4}, v{vVpf}
    v_add_u32 v{vVpf2}, v{T+4}, v{vVpf2}
    """)
    def vpf():
        g.c("pull the tail of the partner workgroup's V into this die's L2")
        if o.vpf > 8:
            n = o.vpf - 8
            m = ((1 << (8*n)) - 1) << (64 - 8*n)
            e(f"s_mov_b32 exec_lo, {m & 0xffffffff:#x}\ns_mov_b32 exec_hi, {m >> 32:#x}")
            g.vmem(f"global_load_dword v{DUM}, v{vVpf2}, {sr(pV,2)} {o.vpol}", "vpf")
            e("s_mov_b64 exec, -1")
        if 0 < o.vpf < 8:
            m = ((1 << (8*o.vpf)) - 1) << (64 - 8*o.vpf)
            e(f"s_mov_b32 exec_lo, {m & 0xffffffff:#x}\ns_mov_b32 exec_hi, {m >> 32:#x}")
        if o.vpf:
            g.vmem(f"global_load_dword v{DUM}, v{vVpf}, {sr(pV,2)} {o.vpol}", "vpf")
            e("s_mov_b64 exec, -1")
    def w1load():
        e(f"v_add_u32 v{vW1b}, 7168, v{vW1}")
        for u in range(4):
            g.vmem(f"global_load_dwordx4 {r(W1+4*u,4)}, v{vW1 if u < 2 else vW1b}, {sr(pW1,2)} offset:{3584*(u&1)} {o.wpol}", f"w1{u}")
            if o.gapq: e(f"s_nop {o.gapq}")
    def second():
        if o.qb4: e("s_barrier")
        wqload(4, 8)
        if o.w1pos == 0: e("s_barrier"); w1load()
    if o.q2pos == 0: second()
    g.c("layernorm")
    if o.fine: g.stamp("prex")
    g.wait("x")
    if o.fine: g.stamp("x")
    if o.q2pos == 1: second()
    U = T
    for d in range(4):
        e(f"v_lshlrev_b32 v{U+2*d}, 16, v{X8+d}\nv_and_b32 v{U+2*d+1}, 0xffff0000, v{X8+d}")
    e(f"""
    v_pk_add_f32 {r(T+8,2)}, {r(U,2)}, {r(U+2,2)}
    v_pk_add_f32 {r(T+10,2)}, {r(U+4,2)}, {r(U+6,2)}
    v_pk_add_f32 {r(T+8,2)}, {r(T+8,2)}, {r(T+10,2)}
    v_add_f32 v{T+8}, v{T+8}, v{T+9}
    """)
    wave_sum_to_sgpr(g, T+8, 44)
    e(f"v_mov_b32 v{T+12}, 0x3b000000\nv_mul_f32 v{T+10}, s44, v{T+12}")
    for d in range(4):
        e(f"v_pk_add_f32 {r(U+2*d,2)}, {r(U+2*d,2)}, {r(T+10,2)} op_sel_hi:[1,0] neg_lo:[0,1] neg_hi:[0,1]")
    e(f"v_pk_mul_f32 {r(T+8,2)}, {r(U,2)}, {r(U,2)}")
    for d in range(1, 4):
        e(f"v_pk_fma_f32 {r(T+8,2)}, {r(U+2*d,2)}, {r(U+2*d,2)}, {r(T+8,2)}")
    e(f"v_add_f32 v{T+8}, v{T+8}, v{T+9}")
    wave_sum_to_sgpr(g, T+8, 44)
    e(f"v_mul_f32 v{T+11}, s44, v{T+12}")
    bf16r(g, T+10, T+10)
    bf16r(g, T+11, T+11)
    e(f"v_add_f32 v{T+11}, {EPS:#x}, v{T+11}")
    bf16r(g, T+11, T+11)
    e(f"v_sqrt_f32 v{T+11}, v{T+11}\ns_nop 0")
    bf16r(g, T+11, T+11)
    e(f"v_rcp_f32 v{T+12}, v{T+11}")
    for k, x in enumerate((XQ, XQ+1, XQ+2, XQ+3, XH, XH+1)):
        a = U + 2*(k % 4)
        e(f"""
        v_lshlrev_b32 v{a}, 16, v{x}
        v_and_b32 v{a+1}, 0xffff0000, v{x}
        v_pk_add_f32 {r(a,2)}, {r(a,2)}, {r(T+10,2)} op_sel_hi:[1,0] neg_lo:[0,1] neg_hi:[0,1]
        v_cvt_pk_bf16_f32 v{x}, v{a}, v{a+1}
        v_lshlrev_b32 v{a}, 16, v{x}
        v_and_b32 v{a+1}, 0xffff0000, v{x}
        v_pk_mul_f32 {r(a,2)}, {r(a,2)}, {r(T+12,2)} op_sel_hi:[1,0]
        v_cvt_pk_bf16_f32 v{x}, v{a}, v{a+1}
        """)
    e("s_waitcnt lgkmcnt(0)")
    tagcalc(g)
    e(f"v_mov_b32 v{T+13}, s{sXCC}\nv_mov_b32 v{T+15}, s{sXCC}")
    g.stamp("ln")
    if o.q2pos == 2: second()
    def gemv_rows(W, X, npair, wname):
        for pr in range(npair):
            if wname: g.wait(f"{wname}{2*pr+1}")
            if wname == "wq" and o.fine: g.stamp(f"wq{2*pr+1}")
            for d in range(4):
                a, b = W + 8*pr + d, W + 8*pr + 4 + d
                e(f"v_perm_b32 v{T+2*d}, v{b}, v{a}, s{sLO}\nv_perm_b32 v{T+2*d+1}, v{b}, v{a}, s{sHI}")
            for k in range(8):
                e(f"v_dot2_f32_bf16 v{AQ+k}, v{T+k}, v{X+pr}, {'0' if pr == 0 else 'v%d' % (AQ+k)}")
    def col_reduce(base, who):
        A = AQ
        for k in range(0, 8, 2): e(f"v_permlane32_swap_b32 v{A+k}, v{A+k+1}")
        for k in range(0, 8, 2): e(f"v_add_f32 v{A+k}, v{A+k}, v{A+k+1}")
        e(f"v_permlane16_swap_b32 v{A}, v{A+2}\ns_nop 0\nv_permlane16_swap_b32 v{A+4}, v{A+6}")
        e(f"v_add_f32 v{A}, v{A}, v{A+2}\nv_add_f32 v{A+4}, v{A+4}, v{A+6}")
        for c in (8, 4):
            e("s_nop 0")
            for v in (A, A+4): dpp(g, v, f"row_ror:{c} row_mask:0xf")
        e(f"""
        s_mov_b32 exec_lo, 0x000f000f
        s_mov_b32 exec_hi, 0x000f000f
        ds_write2_b32 v{vRedW}, v{A}, v{A+4} offset0:{base//4} offset1:{base//4+4}
        s_mov_b64 exec, -1
        s_cmp_lg_u32 s{sW}, {who}
        s_waitcnt lgkmcnt(0)
        s_barrier
        """)
    def col_sum(base):
        b = base // 8
        e(f"""
        ds_read2_b64 {r(T,4)}, v{vHp} offset0:{b} offset1:{b+16}
        ds_read2_b64 {r(T+4,4)}, v{vHp} offset0:{b+32} offset1:{b+48}
        s_waitcnt lgkmcnt(0)
        v_pk_add_f32 {r(T,2)}, {r(T,2)}, {r(T+2,2)}
        v_pk_add_f32 {r(T+4,2)}, {r(T+4,2)}, {r(T+6,2)}
        v_add_f32 v{T+12}, v{T}, v{T+4}
        v_add_f32 v{T+14}, v{T+1}, v{T+5}
        """)
    g.c("q slice: 32 columns x 512 rows; h partial: 32 columns x 256 rows")
    gemv_rows(WQ, XQ, 4, "wq")
    g.stamp("wq")
    col_reduce(L_RED, 0)
    e("s_cbranch_scc1 L_noq")
    col_sum(L_RED)
    e(f"""
    v_cvt_pk_bf16_f32 v{T+12}, v{T+12}, v{T+14}
    s_mov_b64 exec, 0xffff
    global_store_dwordx2 v{vPub}, {r(T+12,2)}, {sr(pWS,2)}
    s_mov_b32 exec_lo, 0xffff0000
    global_store_dword v{vPub}, v{T+13}, {sr(pWS,2)}
    s_mov_b32 exec_lo, 0xffff
    global_store_dwordx2 v{vPub}, {r(T+12,2)}, {sr(pWS2,2)} sc1
    s_mov_b64 exec, -1
    """)
    g.stamp("qpub")
    if o.w1pos == 0:
        e("s_waitcnt vmcnt(3)\ns_branch L_w1ok\nL_noq:\ns_waitcnt vmcnt(0)\nL_w1ok:")
        gemv_rows(W1, XH, 2, None)
    else:
        e("L_noq:\ns_barrier")
        if o.vpfpos == 0: vpf()
        w1load()
        if o.vpfpos == 1: vpf()
        gemv_rows(W1, XH, 2, "w1")
    col_reduce(L_RH, 1)
    e("s_cbranch_scc1 L_noh")
    col_sum(L_RH)
    e(f"""
    s_mov_b32 exec_lo, 0
    s_mov_b32 exec_hi, 0xffff
    global_store_dwordx4 v{vPub}, {r(T+12,4)}, {sr(pWS,2)}
    global_store_dwordx4 v{vPub}, {r(T+12,4)}, {sr(pWS2,2)} sc1
    s_mov_b64 exec, -1
    """)
    g.stamp("hpub")
    e("L_noh:\ns_barrier")
    g.vm = []
    def w2load():
        e(f"v_add_u32 v{T+1}, 0x2000, v{vW2o}")
        for n in range(14):
            g.vmem(f"global_load_dword v{W2+n}, v{vW2o if n < 8 else T+1}, {sr(pW2,2)} offset:{(n&7)*1024-4096} {o.wpol}", "w2")
    def woload():
        for n in range(32):
            if n and n % 8 == 0: e(f"v_add_u32 v{vWOo}, 0x2000, v{vWOo}")
            g.vmem(f"global_load_dword v{WO+n}, v{vWOo}, {sr(pWO,2)} offset:{(n & 7)*1024-4096} {o.wpol}", f"wo{n}")
    if o.vpfpos == 2: vpf()
    if o.bmode == "early": w2load()
    if o.ptab:
        g.vmem(f"global_load_dword v{DUM}, v{vPT}, {sr(pWS,2)}", "pt")
    g.vmem(f"global_load_dword v{DUM}, v{vAF}, {sr(pWS,2)} {o.ptpol}", "pt")
    if o.mark >= 0: g.vmem(f"global_load_dword v{DUM}, v{vMk}, {sr(pWS,2)} sc1", "pt")
    h_loads = [f"global_load_dwordx2 {r(HG,2)}, v{vHG}, {sr(pWS,2)} sc1"]
    if o.bmode == "all":
        e("s_barrier")
        w2load()
        g.vmem(h_loads[0], "hg")
        woload()
        g.stamp("wiss")
        check_retry_fs(g, "h", h_loads, [HG+1], f"s_waitcnt vmcnt({g.cnt('hg')})")
    else:
        e("s_waitcnt vmcnt(%d)" % o.hwait)
        e(h_loads[0])
        check_retry_fs(g, "h", h_loads, [HG+1], "s_waitcnt vmcnt(0)")
    e(f"v_mov_b32 v{T+13}, s{sTAG}\nv_mov_b32 v{T+15}, s{sTAG}")
    xor_reduce(g, HG, T, "add", (4,))
    bf16r(g, HG, HG)
    e(f"""
    v_mul_f32 v{T}, {LOG2E | 0x80000000:#x}, v{HG}
    v_exp_f32 v{T}, v{T}
    s_nop 0
    v_add_f32 v{T}, 1.0, v{T}
    v_rcp_f32 v{T}, v{T}
    s_nop 0
    v_mul_f32 v{HG}, v{HG}, v{T}
    s_nop 1
    v_mov_b32_dpp v{T}, v{HG} quad_perm:[1,0,3,2] row_mask:0xf bank_mask:0xf
    v_cvt_pk_bf16_f32 v{HG}, v{HG}, v{T}
    s_nop 0
    """)
    for n in range(7): e(f"v_readlane_b32 s{sH+n}, v{HG}, {2*n}")
    g.stamp("h")
    def markwait():
        g.c("start the remaining weight loads once the partner attention workgroup is far enough into V")
        if o.mark >= 0: vec_wait(g, "mk", vMk, 64)
        g.vm = []
        g.stamp("mark")
    def ffn2():
        g.wait("w2")
        g.stamp("w2")
        for n in range(7):
            e(f"v_perm_b32 v{WOP+2*n}, v{W2+2*n+1}, v{W2+2*n}, s{sLO}\nv_perm_b32 v{WOP+2*n+1}, v{W2+2*n+1}, v{W2+2*n}, s{sHI}")
        for n in range(7):
            for c in range(2):
                e(f"v_dot2_f32_bf16 v{T+10+c}, v{WOP+2*n+c}, s{sH+n}, {'0' if n == 0 else 'v%d' % (T+10+c)}")
        e(f"s_cmp_lg_u32 s{sW}, 2\ns_nop 1\nds_write_b64 v{vT8}, {r(T+10,2)} offset:{L_B}")
    if o.bmode == "early":
        ffn2()
        e("s_waitcnt lgkmcnt(0)\ns_barrier\ns_cbranch_scc1 L_nob")
        sum4(g, vL8, L_B, 1)
        e(f"global_store_dwordx4 v{vAp}, {r(T+12,4)}, {sr(pWS,2)} sc1\nL_nob:")
        g.stamp("bpub")
        markwait(); woload()
    else:
        if o.bmode == "late": markwait(); w2load(); woload()
        ffn2()
        e(f"s_cselect_b32 s{sCNT}, {L_A-L_B}, 0\nv_add_u32 v{vL8}, s{sCNT}, v{vL8}")
    def woperm(a, b):
        for n in range(a, b):
            e(f"v_perm_b32 v{WOP+2*n}, v{WO+2*n+1}, v{WO+2*n}, s{sLO}\nv_perm_b32 v{WOP+2*n+1}, v{WO+2*n+1}, v{WO+2*n}, s{sHI}")
    ml_loads = [f"global_load_dwordx4 {r(MLG+4*u,4)}, v{vMLG}, {sr(pWS,2)} offset:{64*u} sc1" for u in range(4)]
    o_loads = [f"global_load_dwordx4 {r(OG+4*u,4)}, v{vOG}, {sr(pWS,2)} offset:{1024*u} sc1" for u in range(4)]
    for q in range(4):
        g.wait(f"wo{8*q+7}")
        if q == o.oq:
            for ld in ml_loads: g.vmem(ld, "ml")
            for ld in o_loads: g.vmem(ld, "o")
        woperm(4*q, 4*q+4)
    g.stamp("wo")
    check_retry(g, "ml", ml_loads, [MLG+4*u+k for u in range(4) for k in (1, 3)], f"s_waitcnt vmcnt({g.cnt('ml')})")
    g.stamp("ml")
    M_, L_ = T, T+1
    e(f"""
    v_max3_f32 v{M_}, v{MLG}, v{MLG+4}, v{MLG+8}
    v_max_f32 v{M_}, v{M_}, v{MLG+12}
    """)
    xor_reduce(g, M_, T+2, "max", (5, 4))
    for u in range(4): e(f"v_sub_f32 v{MLG+4*u}, v{MLG+4*u}, v{M_}")
    for u in range(4): e(f"v_mul_f32 v{MLG+4*u}, s{sL2}, v{MLG+4*u}")
    for u in range(4): e(f"v_exp_f32 v{MLG+4*u}, v{MLG+4*u}")
    e(f"v_mul_f32 v{L_}, v{MLG}, v{MLG+2}")
    for u in range(1, 4): e(f"v_fmac_f32 v{L_}, v{MLG+4*u}, v{MLG+4*u+2}")
    xor_reduce(g, L_, T+2, "add", (5, 4))
    e(f"v_rcp_f32 v{L_}, v{L_}")
    g.stamp("wgt")
    check_retry(g, "o", o_loads, [OG+4*u+k for u in range(4) for k in (1, 3)], "s_waitcnt vmcnt(0)")
    g.stamp("ogot")
    a0, a1 = T+2, T+3
    e(f"v_mul_f32 v{a0}, v{MLG}, v{OG}\nv_mul_f32 v{a1}, v{MLG}, v{OG+2}")
    for u in range(1, 4): e(f"v_fmac_f32 v{a0}, v{MLG+4*u}, v{OG+4*u}\nv_fmac_f32 v{a1}, v{MLG+4*u}, v{OG+4*u+2}")
    e(f"""
    s_nop 1
    v_permlane32_swap_b32 v{a0}, v{a1}
    v_add_f32 v{a0}, v{a0}, v{a1}
    v_mov_b32 v{a1}, v{a0}
    s_nop 1
    v_permlane16_swap_b32 v{a0}, v{a1}
    v_add_f32 v{a0}, v{a0}, v{a1}
    v_mul_f32 v{a0}, v{a0}, v{L_}
    v_mul_f32 v{a1}, 1.0, v{a0}
    s_nop 1
    v_permlane32_swap_b32 v{a0}, v{a1}
    v_cvt_pk_bf16_f32 v{a0}, v{a0}, v{a1}
    s_nop 0
    """)
    for n in range(3): e(f"v_readlane_b32 s{S0+n}, v{a0}, {n}")
    for n in range(16):
        if n + 3 < 16: e(f"v_readlane_b32 s{S0+n+3}, v{a0}, {n+3}")
        for c in range(2):
            e(f"v_dot2_f32_bf16 v{T+8+c}, v{WOP+2*n+c}, s{S0+n}, {'0' if n == 0 else 'v%d' % (T+8+c)}")
    e(f"""
    {f"s_cmp_lg_u32 s{sW}, 0" if o.bmode == "early" else f"s_bitcmp1_b32 s{sW}, 0"}
    s_nop 1
    ds_write_b64 v{vT8}, {r(T+8,2)} offset:{L_A}
    s_waitcnt lgkmcnt(0)
    s_barrier
    s_cbranch_scc1 L_out
    """)
    sum4(g, vL8, L_A if o.bmode == "early" else L_B, 1)
    e(f"global_store_dwordx4 v{vAp}, {r(T+12,4)}, {sr(pWS,2)} sc1\ns_mov_b64 exec, 1\nglobal_store_dword v{vAF}, v{VTAG}, {sr(pWS,2)}")
    g.stamp("apub")
    if o.echop:
        e(f"""
        s_cmp_lg_u32 s2, {o.echowg}
        s_cbranch_scc1 L_out
        s_cmp_lg_u32 s{sW}, 0
        s_cbranch_scc1 L_out
        s_memtime s[94:95]
        s_waitcnt lgkmcnt(0)
        s_sub_u32 s90, s90, s92
        s_mul_i32 s90, s90, {o.echok}
        L_echop:
        s_memtime s[96:97]
        s_waitcnt lgkmcnt(0)
        s_sub_u32 s96, s96, s94
        s_cmp_lt_u32 s96, s90
        s_cbranch_scc1 L_echop
        """)
    e("s_branch L_out" if o.stamps else "s_endpgm")
    g.newrole(vm0, nst0)
    cut2 = len(g.lines)
    e("L_att:")
    g.c("prefetch this kernel's code into L2")
    e(f"v_lshlrev_b32 v{T}, 7, v0\nv_cmp_gt_u32 vcc, CODE_BYTES-128, v{T}\ns_and_b64 exec, exec, vcc\ns_cbranch_execz L_nocp\nglobal_load_dword v{DUM}, v{T}, s[{sR}:{sR+1}]\nL_nocp:\ns_mov_b64 exec, -1")
    e(f"""
    s_lshl_b32 s41, s{sG}, 24
    s_lshl_b32 s42, s{sJ}, 16
    s_add_u32 s41, s41, s42
    s_add_u32 s41, s41, 0xF00000
    v_lshl_add_u32 v{vVo}, v{VW}, 14, s41
    v_bfe_u32 v{T+13}, v0, 2, 2
    v_lshl_add_u32 v{T+14}, v{T+13}, 8, v{T+12}
    v_bfe_u32 v{T+15}, v0, 4, 2
    v_lshl_add_u32 v{T+14}, v{T+15}, 6, v{T+14}
    v_add_u32 v{vKo}, v{T+14}, v{vVo}
    v_add_u32 v{vVo}, v{VL16}, v{vVo}
    s_lshl_b32 s{S0}, s{sJ}, 10
    """)
    g.c("each workgroup walks its 16 load slots in a rotated order (spreads the memory channels)")
    for n in range(1, 16):
        e(f"s_add_u32 s{S0+n}, s{S0+n-1}, 1024\ns_and_b32 s{S0+n}, s{S0+n}, 0x3fff")
    e(f"""
    s_lshl_b32 s{sL2}, s{sG}, 7
    s_lshl_b32 s{sL2+1}, s{sJ}, 3
    s_add_u32 s{sL2}, s{sL2}, s{sL2+1}
    s_and_b32 s{sL2+1}, s{sW}, 1
    s_lshl2_add_u32 s{sL2}, s{sL2+1}, s{sL2}
    v_lshrrev_b32 v{T+2}, 3, v0
    v_and_b32 v{T+3}, 7, v0
    v_min_u32 v{T+3}, 6, v{T+3}
    s_mul_i32 s52, s{sJ}, {32*3584}
    s_mul_i32 s53, s{sG}, 448
    s_add_u32 s52, s52, s53
    v_mul_u32_u24 v{T+2}, 3584, v{T+2}
    v_lshl_add_u32 v{T+3}, v{T+3}, 6, s52
    v_add_u32 v{T+2}, v{T+2}, v{T+3}
    s_lshl_b32 s52, s{sG}, 11
    s_lshl_b32 s53, s{sJ}, 7
    s_add_u32 s52, s52, s53
    s_add_u32 s52, s52, {QREC:#x}
    s_lshl_b32 s54, s{sG}, 10
    s_lshr_b32 s53, s53, 1
    s_add_u32 s53, s53, s54
    s_add_u32 s53, s53, {QFLG:#x}
    s_lshl_b32 s54, s{sG}, 12
    s_lshl_b32 s55, s{sJ}, 8
    s_add_u32 s54, s54, s55
    s_add_u32 s54, s54, {HREC:#x}
    s_add_u32 s55, s54, 128
    s_cmp_eq_u32 s{sW}, 1
    s_cselect_b32 s52, s53, s52
    s_cmp_eq_u32 s{sW}, 2
    s_cselect_b32 s52, s54, s52
    s_cmp_eq_u32 s{sW}, 3
    s_cselect_b32 s52, s55, s52
    v_mov_b32 v{T+3}, s52
    s_waitcnt lgkmcnt(0)
    """)
    g.c("bring the partner's q / hint / h lines into this die's L2 ahead of its stores")
    g.vmem(f"global_load_dword v{DUM}, v{T+3}, {sr(pWS,2)} {o.ptpol}", "pt")
    e(f"v_mov_b32 v{vOF}, v{T+2}")
    def w1pf():
        g.c("pull this die's share of w1 into L2 ahead of the key stream")
        g.vmem(f"global_load_dword v{DUM}, v{vOF}, {sr(pW1,2)} {o.wpol}", "pf")
    if o.w1pf == 1: w1pf()
    def kload(n):
        e(f"v_add_u32 v{T+n%2}, s{S0+n}, v{vKo}")
        g.vmem(f"global_load_dwordx4 {r(K+4*n,4)}, v{T+n%2}, {sr(pK,2)} {o.kpol}", f"k{n}")
        if o.gap > 1: e(f"s_nop {o.gap-2}")
    def vload(n):
        e(f"v_add_u32 v{T+n%2}, s{S0+n}, v{vVo}")
        g.vmem(f"global_load_dwordx4 {r(V+4*n,4)}, v{T+n%2}, {sr(pV,2)} {o.vpol}", f"v{n}")
        if o.gap > 1: e(f"s_nop {o.gap-2}")
    for n in range(o.k0): kload(n)
    e(f"""
    s_load_dword s{sTAG}, {sr(pWS,2)}, s{sSC}
    s_load_dword s{sXRES}, {sr(pX,2)}, s{sL2}
    s_mov_b32 s{sSPIN}, {SPIN_LIMIT:#x}
    s_mov_b32 s{sCO}, 1
    s_add_u32 s{pWS2}, s{pWS}, {SDELTA:#x}
    s_addc_u32 s{pWS2+1}, s{pWS+1}, 0
    s_lshl_b32 s52, s{sG}, 11
    s_add_u32 s52, s52, {QREC:#x}
    v_lshl_add_u32 v{vQG}, v{T+14}, 1, s52
    s_lshl_b32 s52, s{sG}, 16
    s_lshl_b32 s53, s{sJ}, 8
    s_add_u32 s52, s52, s53
    v_lshrrev_b32 v{T+2}, 4, v0
    v_and_b32 v{T+3}, 15, v0
    v_lshl_add_u32 v{vOW}, v{T+2}, 12, s52
    v_lshl_add_u32 v{vOW}, v{T+3}, 4, v{vOW}
    v_lshrrev_b32 v{T+2}, 2, v0
    v_lshlrev_b32 v{vOrd}, 4, v{T+2}
    v_bfe_u32 v{T+4}, v0, 1, 1
    v_lshl_add_u32 v{vOrd}, v{T+4}, 10, v{vOrd}
    v_and_b32 v{T+4}, 1, v0
    v_lshl_add_u32 v{vOrd}, v{T+4}, 3, v{vOrd}
    s_lshl_b32 s52, s{sG}, 2
    s_add_u32 s52, s52, s{sW}                 ; head
    s_lshl_b32 s53, s52, 8
    s_lshl_b32 s54, s{sJ}, 4
    s_add_u32 s53, s53, s54
    s_add_u32 s53, s53, {MLREC:#x}
    v_mov_b32 v{vMLp}, s53
    v_lshlrev_b32 v{vMLw}, 5, v{T+13}
    v_lshl_add_u32 v{vMLw}, v{VW}, 3, v{vMLw}
    v_lshlrev_b32 v{vMLr}, 5, v{T+15}
    v_lshl_add_u32 v{vFr}, v{VW}, 3, v{vMLr}
    v_lshl_add_u32 v{vLw}, v{VW}, 11, v{VL16}
    s_and_b32 s53, s2, 127
    s_lshl_b32 s53, s53, 7
    s_add_u32 s53, s53, {MARK:#x}
    v_mov_b32 v{vMkA}, s53
    s_lshl_b32 s53, s{sG}, 7
    s_add_u32 s53, s53, {AFLG:#x}
    v_lshl_add_u32 v{vAFr}, v{T+3}, 2, s53
    s_lshr_b32 s53, s{sL2}, 8
    s_lshl_b32 s53, s53, 15
    s_and_b32 s54, s{sL2}, 255
    s_lshl_b32 s54, s54, 2
    s_add_u32 s53, s53, s54
    s_add_u32 s53, s53, {AREC:#x}
    v_and_b32 v{T+4}, 31, v0
    v_lshl_add_u32 v{vFin}, v{T+4}, 10, s53
    v_bfe_u32 v{T+4}, v0, 5, 1
    v_lshl_add_u32 v{vFin}, v{T+4}, 17, v{vFin}
    v_bfe_u32 v{T+4}, v0, 4, 1
    v_lshl_add_u32 v{vOut}, v{T+4}, 1, s{sL2}
    v_cmp_eq_u32 vcc, 0, v{T+4}
    s_lshl_b32 s{sFOFF}, s{sG}, 10
    s_add_u32 s{sFOFF}, s{sFOFF}, {QFLG:#x}
    s_lshl_b32 s55, s{sW}, 4
    """)
    if not o.adelay:
        for n in range(o.k0, 16): kload(n)
    e(f"""
    s_waitcnt lgkmcnt(0)
    s_lshl_b32 s52, s{sXRES}, 16
    s_and_b32 s53, s{sXRES}, 0xffff0000
    v_mov_b32 v{T+2}, s52
    v_mov_b32 v{T+3}, s53
    v_cndmask_b32 v{vXres}, v{T+3}, v{T+2}, vcc
    s_mov_b32 s{sSC}, {SCALE:#x}
    s_mov_b32 s{sSC+1}, {SCALE:#x}
    s_mov_b32 s{sL2}, {LOG2E:#x}
    s_mov_b32 s{sL2+1}, {LOG2E:#x}
    """)
    if o.adelay:
        g.stamp("ep")
        if o.w1pf == 2: w1pf()
        for n in range(o.k0, 16): kload(n)
    tagcalc(g)
    g.stamp("kiss")
    q_loads = [f"global_load_dwordx4 {r(QG+4*u,4)}, v{vQG}, {sr(pWS,2)} offset:{16*u} sc1" for u in range(2)]
    for n in range(o.v2 + 1):
        if n == o.ptpos:
            g.c("bring the lines this workgroup will write later into this die's L2")
            g.vmem(f"global_load_dword v{DUM}, v{vOW}, {sr(pWS,2)} {o.ptpol}", "pt")
            g.vmem(f"global_load_dword v{DUM}, v{vMLp}, {sr(pWS,2)} {o.ptpol}", "pt")
            if o.tlbout: g.vmem(f"global_load_ushort v{DUM}, v{vOut}, {sr(pOUT,2)}", "pt")
        if n == o.v1:
            g.stamp("fwait")
            if o.qflag:
                flag_wait(g, "qf", VTAGM, sFL)
                if o.stamps: e("s_mov_b32 s84, 0\ns_mov_b32 s86, 0\ns_mov_b32 s88, 0")
            g.stamp("qiss")
            for ld in q_loads: g.vmem(ld, "qg")
            if o.qbar: e("s_barrier")
        if n == o.mark:
            e("s_mov_b64 exec, 1")
            g.vmem(f"global_store_dword v{vMkA}, v{VTAG}, {sr(pWS,2)} sc1", "mk")
            e("s_mov_b64 exec, -1")
        if n < o.v2: vload(n)
    g.stamp("viss")
    def vperm(n, ee):
        d = ee >> 1
        e(f"v_perm_b32 v{(TV0 if n < 4 else V)+4*ee+(n&3)}, v{V+4*(2*n+1)+d}, v{V+4*(2*n)+d}, s{sHI if ee & 1 else sLO}")
    npre = max(0, min(o.v1 // 2 - 1, 7))
    for n in range(npre):
        g.wait(f"v{2*n+1}")
        for ee in range(8): vperm(n, ee)
    check_retry_fs(g, "q", q_loads, [QG+1, QG+3, QG+5, QG+7], f"s_waitcnt vmcnt({g.cnt('qg')})")
    g.stamp("qgot")
    for k in range(4): e(f"v_mov_b32 v{Q+k}, v{QG+2*k}")
    e("s_nop 1")
    for n in range(16): e(f"v_mfma_f32_16x16x32_bf16 {r(K+4*n,4)}, {r(K+4*n,4)}, {r(Q,4)}, 0")
    gap0, o.gap = o.gap, 0
    for n in range(o.v2, o.v3): vload(n)
    for h in range(2):
        for c in range(4):
            for n in range(8*h, 8*h+8):
                if c == 0: e(f"v_mov_b32_dpp v{S+n}, v{K+4*n} quad_perm:[0,0,0,0] row_mask:0xf bank_mask:0xf")
                else: e(f"v_add_f32_dpp v{S+n}, v{K+4*n+c}, v{S+n} quad_perm:[{c},{c},{c},{c}] row_mask:0xf bank_mask:0xf")
    for n in range(8): e(f"v_cvt_pk_bf16_f32 v{T+n}, v{S+2*n}, v{S+2*n+1}")
    for n in range(8): e(f"v_lshlrev_b32 v{S+2*n}, 16, v{T+n}\nv_and_b32 v{S+2*n+1}, 0xffff0000, v{T+n}")
    for n in range(8): e(f"v_pk_mul_f32 {r(S+2*n,2)}, {r(S+2*n,2)}, {sr(sSC,2)}")
    for n in range(8): e(f"v_cvt_pk_bf16_f32 v{T+n}, v{S+2*n}, v{S+2*n+1}")
    for n in range(8): e(f"v_lshlrev_b32 v{S+2*n}, 16, v{T+n}\nv_and_b32 v{S+2*n+1}, 0xffff0000, v{T+n}")
    m, l = T+8, T+9
    for k in range(5): e(f"v_max3_f32 v{T+k}, v{S+3*k}, v{S+3*k+1}, v{S+3*k+2}")
    e(f"v_max3_f32 v{T}, v{T}, v{T+1}, v{T+2}\nv_max3_f32 v{T+3}, v{T+3}, v{T+4}, v{S+15}\nv_max_f32 v{m}, v{T}, v{T+3}")
    xor_reduce(g, m, T, "max", (5, 4))
    for n in range(8): e(f"v_pk_add_f32 {r(S+2*n,2)}, {r(S+2*n,2)}, {r(m,2)} op_sel_hi:[1,0] neg_lo:[0,1] neg_hi:[0,1]")
    for n in range(8): e(f"v_pk_mul_f32 {r(S+2*n,2)}, {r(S+2*n,2)}, {sr(sL2,2)}")
    for k in range(16): e(f"v_exp_f32 v{S+k}, v{S+k}")
    for n in range(4): e(f"v_pk_add_f32 {r(T+2*n,2)}, {r(S+4*n,2)}, {r(S+4*n+2,2)}")
    e(f"""
    v_pk_add_f32 {r(T,2)}, {r(T,2)}, {r(T+2,2)}
    v_pk_add_f32 {r(T+4,2)}, {r(T+4,2)}, {r(T+6,2)}
    v_pk_add_f32 {r(T,2)}, {r(T,2)}, {r(T+4,2)}
    v_add_f32 v{l}, v{T}, v{T+1}
    v_mov_b32 v{T}, v{l}
    v_cvt_pk_bf16_f32 v{P8}, v{S}, v{S+1}
    v_cvt_pk_bf16_f32 v{P8+1}, v{S+2}, v{S+3}
    v_permlane32_swap_b32 v{l}, v{T}
    v_add_f32 v{l}, v{l}, v{T}
    v_mov_b32 v{T}, v{l}
    v_cvt_pk_bf16_f32 v{P8+2}, v{S+4}, v{S+5}
    v_cvt_pk_bf16_f32 v{P8+3}, v{S+6}, v{S+7}
    v_permlane16_swap_b32 v{l}, v{T}
    v_add_f32 v{l}, v{l}, v{T}
    s_mov_b64 exec, 0x1111
    ds_write_b64 v{vMLw}, {r(m,2)} offset:{L_ML}
    s_mov_b64 exec, -1
    """)
    for n in range(4, 8): e(f"v_cvt_pk_bf16_f32 v{P8+n}, v{S+2*n}, v{S+2*n+1}")
    g.stamp("p")
    for n in range(max(o.v2, o.v3), 16): vload(n)
    e(f"""
    s_waitcnt lgkmcnt(0)
    s_barrier
    ds_read_b128 {r(T,4)}, v{vMLr} offset:{L_ML}
    ds_read_b128 {r(T+4,4)}, v{vMLr} offset:{L_ML+16}
    ds_read_b32 v{vFr}, v{vFr} offset:{L_ML}
    """)
    if npre < 7:
        g.wait(f"v{2*npre+1}")
        for ee in range(8): vperm(npre, ee)
        npre += 1
    e(f"""
    s_waitcnt lgkmcnt(0)
    v_max3_f32 v{T+12}, v{T}, v{T+2}, v{T+4}
    v_max_f32 v{T+12}, v{T+12}, v{T+6}
    v_sub_f32 v{vFr}, v{vFr}, v{T+12}
    v_sub_f32 v{T}, v{T}, v{T+12}
    v_sub_f32 v{T+2}, v{T+2}, v{T+12}
    v_sub_f32 v{T+4}, v{T+4}, v{T+12}
    v_sub_f32 v{T+6}, v{T+6}, v{T+12}
    v_mul_f32 v{vFr}, s{sL2}, v{vFr}
    v_mul_f32 v{T}, s{sL2}, v{T}
    v_mul_f32 v{T+2}, s{sL2}, v{T+2}
    v_mul_f32 v{T+4}, s{sL2}, v{T+4}
    v_mul_f32 v{T+6}, s{sL2}, v{T+6}
    v_exp_f32 v{vFr}, v{vFr}
    v_exp_f32 v{T}, v{T}
    v_exp_f32 v{T+2}, v{T+2}
    v_exp_f32 v{T+4}, v{T+4}
    v_exp_f32 v{T+6}, v{T+6}
    v_mul_f32 v{T+14}, v{T}, v{T+1}
    v_fmac_f32 v{T+14}, v{T+2}, v{T+3}
    v_fmac_f32 v{T+14}, v{T+4}, v{T+5}
    v_fmac_f32 v{T+14}, v{T+6}, v{T+7}
    v_mov_b32 v{T+13}, s{sTAG}
    v_mov_b32 v{T+15}, s{sTAG}
    s_lshl_b64 exec, 1, s55
    """)
    fs_store(g, [(f"global_store_dwordx4 v{vMLp}, {r(T+12,4)}, {sr(pWS,2)}", True)], "mlpub")
    e("s_mov_b64 exec, -1")
    g.stamp("mlp")
    def pv(b, ee): e(f"v_mfma_f32_16x16x32_bf16 {r(DA+4*ee,4)}, {r(P8+4*b,4)}, {r((TV0 if b == 0 else V)+4*ee,4)}, {'0' if b == 0 else r(DA+4*ee,4)}")
    def sc(ee): e(f"v_mul_f32 v{OUT+ee}, v{DA+4*ee}, v{vFr}")
    if npre >= 4:
        for ee in range(8): pv(0, ee)
    for n in range(npre, 7):
        g.wait(f"v{2*n+1}")
        for ee in range(8): vperm(n, ee)
        if n == 3:
            for ee in range(8): pv(0, ee)
    g.wait("v15")
    g.stamp("v")
    for ee in range(3): vperm(7, ee)
    for ee in range(8):
        pv(1, ee)
        if ee + 3 < 8: vperm(7, ee + 3)
        if ee >= 5: sc(ee - 5)
    sc(3)
    e(f"ds_write_b128 v{vLw}, {r(OUT,4)} offset:{L_O}")
    sc(4); e("s_nop 0"); sc(5); e("s_nop 0"); sc(6); e("s_nop 0"); sc(7)
    e(f"""
    ds_write_b128 v{vLw}, {r(OUT+4,4)} offset:{L_O+1024}
    s_waitcnt lgkmcnt(0)
    s_barrier
    """)
    sum4(g, vOrd, L_O, 4)
    fs_store(g, [(f"global_store_dwordx4 v{vOW}, {r(T+12,4)}, {sr(pWS,2)}", True)], "opub")
    g.stamp("opub")
    e(f"s_cmp_ge_u32 s{sW}, 2\ns_cbranch_scc1 L_out")
    g.c("final reduction of two output columns per wave: lanes 0-31 attention partials, lanes 32-63 FFN partials")
    if o.agate: vec_wait(g, "af", vAFr, 64)
    g.stamp("agate")
    f_loads = [f"global_load_dwordx4 {r(T+8,4)}, v{vFin}, {sr(pWS,2)} sc1"]
    e(f_loads[0])
    check_retry(g, "a", f_loads, [T+9, T+11], "s_waitcnt vmcnt(0)")
    g.stamp("agot")
    e(f"""
    s_nop 1
    v_permlane16_swap_b32 v{T+8}, v{T+10}
    v_add_f32 v{T+1}, v{T+8}, v{T+10}
    """)
    for c in (8, 4, 2, 1):
        e("s_nop 1"); dpp(g, T+1, f"row_ror:{c} row_mask:0xf")
    g.c("rows 0/1 hold A of the two columns, rows 2/3 hold B")
    bf16r(g, T+1, T+1)
    e(f"v_mov_b32 v{T}, v{T+1}\ns_nop 1\nv_permlane32_swap_b32 v{T+1}, v{T}\nv_add_f32 v{T+1}, v{vXres}, v{T+1}")
    bf16r(g, T+1, T+1)
    e(f"""
    v_add_f32 v{T+1}, v{T+1}, v{T}
    v_cvt_pk_bf16_f32 v{T+1}, v{T+1}, v{T+1}
    s_mov_b64 exec, 0x10001
    global_store_short v{vOut}, v{T+1}, {sr(pOUT,2)} {o.outpol}
    s_cmp_lg_u32 s2, {o.epwg}
    s_cbranch_scc1 L_out
    v_mov_b32 v{T+2}, {EPOCH:#x}
    global_store_dword v{T+2}, v{VTAG}, {sr(pWS,2)} sc1
    """)
    g.stamp("fin")
    if o.echo and not o.echop:
        clk = "s_memtime" if o.echom in ("cyc", "fix") else "s_memrealtime"
        e(f"""
        {clk} s[94:95]
        s_waitcnt lgkmcnt(0)
        s_sub_u32 s90, s90, s92
        s_mul_i32 s90, s90, {o.echok}
        {"s_lshr_b32 s90, s90, 4" if o.echom == "c2r" else f"s_mov_b32 s90, {o.echok}" if o.echom == "fix" else ""}
        L_echo:
        {clk} s[96:97]
        s_waitcnt lgkmcnt(0)
        s_sub_u32 s96, s96, s94
        s_cmp_lt_u32 s96, s90
        s_cbranch_scc1 L_echo
        """)
    e("s_branch L_out" if o.stamps else "s_endpgm")
    cut3 = len(g.lines)
    g.lines = g.lines[:cut1] + g.lines[cut2:cut3] + g.lines[cut1:cut2]
    g.newrole([], 0)
    e("L_out:")
    if o.stamps:
        e(f"""
        s_mov_b64 exec, -1
        s_waitcnt vmcnt(0)
        s_memtime s[98:99]
        s_memrealtime s[46:47]
        v_mov_b32 v{VST}, 0
        s_waitcnt lgkmcnt(0)
        """)
        for k in range(g.maxst): e(f"v_writelane_b32 v{VST}, s{sST+2*k}, {k}")
        e(f"""
        v_writelane_b32 v{VST}, s98, 61
        v_writelane_b32 v{VST}, s100, 62
        v_writelane_b32 v{VST}, s46, 63
        v_writelane_b32 v{VST}, s{sSPIN}, 59
        v_writelane_b32 v{VST}, s{sCO}, 60
        v_writelane_b32 v{VST}, s97, 58
        s_lshl_b32 s45, s2, 10
        s_add_u32 s45, s45, {STAMPS:#x}
        v_lshl_add_u32 v{T}, v0, 2, s45
        global_store_dword v{T}, v{VST}, {sr(pWS,2)}
        """)
    e("L_end:\ns_endpgm")
    for t in g.tail: e(t)
    e("L_code_end:")
    if o.stamps:
        assert sST + 2*g.maxst <= 96, g.maxst
        z = [f"    s_mov_b32 s{sST+2*k}, 0" for k in range(1, g.maxst)]
        g.lines[3:3] = z
    return g

HEADER = open(f"cdna_kernels/{NAME}.s.ref").read().split("; Override launch geometry")[0]

def emit(o, path):
    global sFL
    sFL = 80 if o.stamps else 64
    g = build(o)
    errs = hazard.check(g.lines)
    for x in errs: print(x, file=sys.stderr)
    txt = HEADER
    txt += f"; @launch grid=(256,1,1) block=(256,1,1) lds={LDS_BYTES}\n"
    txt += f'.amdgcn_target "amdgcn-amd-amdhsa--gfx950"\n.text\n.globl {NAME}_kernel\n.p2align 12\n.type {NAME}_kernel,@function\n'
    txt += f".set CODE_BYTES, L_code_end - {NAME}_kernel\n"
    txt += "\n".join(g.lines) + "\n"
    txt += f'''.section .rodata,"a"
.p2align 6
.amdhsa_kernel {NAME}_kernel
  .amdhsa_next_free_vgpr {NVGPR}
  .amdhsa_next_free_sgpr {102 if (o.stamps or o.echo) else 80}
  .amdhsa_accum_offset {NVGPR}
  .amdhsa_group_segment_fixed_size 0
  .amdhsa_kernarg_size 88
  .amdhsa_user_sgpr_count 2
  .amdhsa_user_sgpr_kernarg_segment_ptr 1
  .amdhsa_system_sgpr_workgroup_id_x 1
  .amdhsa_float_denorm_mode_32 3
  .amdhsa_float_denorm_mode_16_64 3
.end_amdhsa_kernel
'''
    open(path, "w").write(txt)
    if o.stamps: open(path + ".names", "w").write("WG\n" + "\n".join(" ".join(n) for n in g.allnames))
    return len(errs)

if __name__ == "__main__":
    ap = argparse.ArgumentParser()
    ap.add_argument("out")
    ap.add_argument("--stamps", action="store_true")
    ap.add_argument("--echo", default="")
    ap.add_argument("--echop", type=int, default=0)
    ap.add_argument("--echowg", type=int, default=0)
    ap.add_argument("--echom", default="cyc")
    ap.add_argument("--epwg", type=int, default=128)
    ap.add_argument("--echok", type=int, default=4)
    ap.add_argument("--kpol", default="nt")
    ap.add_argument("--vpol", default="nt")
    ap.add_argument("--wpol", default="nt")
    ap.add_argument("--outpol", default="")
    ap.add_argument("--ptpol", default="nt")
    ap.add_argument("--ptpos", type=int, default=0)
    ap.add_argument("--ptab", type=int, default=1)
    ap.add_argument("--tlbout", type=int, default=1)
    ap.add_argument("--gap", type=int, default=4)
    ap.add_argument("--gapq", type=int, default=2)
    ap.add_argument("--v1", type=int, default=4)
    ap.add_argument("--qflag", type=int, default=1)
    ap.add_argument("--qbar", type=int, default=0)
    ap.add_argument("--oq", type=int, default=2)
    ap.add_argument("--owait", default="")
    ap.add_argument("--mark", type=int, default=8)
    ap.add_argument("--bmode", default="early")
    ap.add_argument("--wqpol", default="nt")
    ap.add_argument("--qb4", type=int, default=1)
    ap.add_argument("--k0", type=int, default=0)
    ap.add_argument("--adelay", type=int, default=1)
    ap.add_argument("--q2pos", type=int, default=0)
    ap.add_argument("--w1pos", type=int, default=1)
    ap.add_argument("--w1pf", type=int, default=1)
    ap.add_argument("--hwait", type=int, default=8)
    ap.add_argument("--fine", type=int, default=0)
    ap.add_argument("--s0", type=int, default=1)
    ap.add_argument("--cpf", type=int, default=1)
    ap.add_argument("--vpf", type=int, default=8)
    ap.add_argument("--vpfpos", type=int, default=1)
    ap.add_argument("--v2", type=int, default=16)
    ap.add_argument("--v3", type=int, default=16)
    ap.add_argument("--agate", type=int, default=1)
    o = ap.parse_args()
    import os
    if emit(o, o.out):
        os.remove(o.out); sys.exit(1)
```
